```python
import torch

def _softmax(x, axis=-1):
    return torch.softmax(x, dim=axis)
def _gelu(x):
    return torch.nn.functional.gelu(x, approximate="tanh")
def _silu(x):
    return torch.nn.functional.silu(x)
def _sigmoid(x):
    return torch.sigmoid(x)
def _layernorm(x, axis=-1, eps=1e-5):
    m = x.mean(dim=axis, keepdim=True)
    v = x.var(dim=axis, keepdim=True, unbiased=False)
    return (x - m) / torch.sqrt(v + eps)
def _scatter_add(tgt, idx, src, axis=0):
    return tgt.clone().index_add_(axis, idx, src)
def _segment_sum(src, seg, n):
    out = torch.zeros((n,) + src.shape[1:], dtype=src.dtype)
    return out.index_add_(0, seg, src)
def _pad(x, pw):
    flat = tuple(v for pair in reversed(pw) for v in pair)
    return torch.nn.functional.pad(x, flat)

kernel_name = 'standalone__deep_cross_wide_deep__recsys'

def setup_inputs():

    _w = (lambda a: (lambda t: t.to(torch.bfloat16) if t.is_floating_point() else t)(torch.as_tensor(a)))
    B, F, D = 16384, 100, 32
    V, Nd = min(1000, 100000), 13
    Din = F * D
    H = 4 * D
    return {
        "idx": _w((lambda lo, hi, *s: torch.randint(lo, hi, s))(0, V, B, F).to(torch.int64)),
        "table": _w((lambda *s: torch.randn(*s, dtype=torch.bfloat16) * 1.6)(V, D) * 0.05),
        "x_wide": _w((lambda *s: torch.randn(*s, dtype=torch.bfloat16) * 1.6)(B, Nd)),
        "w_wide": _w((lambda *s: torch.randn(*s, dtype=torch.bfloat16) * 1.6)(Nd) * 0.05),
        "b_wide": _w((lambda *s: torch.randn(*s, dtype=torch.bfloat16) * 1.6)(1) * 0.01),
        "W1": _w((lambda *s: torch.randn(*s, dtype=torch.bfloat16) * 1.6)(Din, H) * (2.0 / Din) ** 0.5),
        "b1": _w((lambda *s: torch.randn(*s, dtype=torch.bfloat16) * 1.6)(H) * 0.01),
        "W2": _w((lambda *s: torch.randn(*s, dtype=torch.bfloat16) * 1.6)(H) * (1.0 / H) ** 0.5),
        "b2": _w((lambda *s: torch.randn(*s, dtype=torch.bfloat16) * 1.6)(1) * 0.01),
    }

def reference(idx, table, x_wide, w_wide, b_wide, W1, b1, W2, b2):
    emb = table[idx]
    deep_in = emb.reshape(emb.shape[0], -1)
    h = deep_in @ W1 + b1
    h = h * (lambda x, dt: x.to(dt))(h > 0, h.dtype)
    deep_logit = h @ W2 + b2
    wide_logit = x_wide @ w_wide + b_wide
    return _sigmoid(wide_logit + deep_logit)
```

```python
import re

REG_RE = re.compile(r'\b([vas])\[(\d+):(\d+)\]|\b([vas])(\d+)\b|\b(vcc|exec|m0|scc)\b')

def regs_of(tok):
    out = []
    for m in REG_RE.finditer(tok):
        if m.group(1):
            out += [(m.group(1), i) for i in range(int(m.group(2)), int(m.group(3)) + 1)]
        elif m.group(4):
            out.append((m.group(4), int(m.group(5))))
        else:
            out.append((m.group(6), 0))
    return out

TRANS = ('v_exp_', 'v_log_', 'v_rcp_', 'v_rsq_', 'v_sqrt_', 'v_sin_', 'v_cos_')

def split_ops(s):
    ops, cur, depth = [], '', 0
    for ch in s:
        if ch == '[': depth += 1
        if ch == ']': depth -= 1
        if ch == ',' and depth == 0:
            ops.append(cur.strip()); cur = ''
        else:
            cur += ch
    if cur.strip(): ops.append(cur.strip())
    return ops

class I:
    def __init__(self, text):
        self.text = text
        t = text.split(';')[0].strip()
        parts = t.split(None, 1)
        self.mn = parts[0]
        ops = split_ops(parts[1]) if len(parts) > 1 else []
        self.ops = ops
        mn = self.mn
        self.kind = 'other'
        self.rd, self.wr = [], []
        self.srcC = []
        self.states = 1
        if mn == 's_nop':
            self.states = int(ops[0], 0) + 1
            self.kind = 'nop'
        elif mn.startswith('v_mfma'):
            self.kind = 'mfma'
            self.wr = regs_of(ops[0]); self.srcAB = regs_of(ops[1]) + regs_of(ops[2]); self.srcC = regs_of(ops[3])
            self.rd = self.srcAB + self.srcC
            self.passes = 8 if '32x32x16' in mn else 4
        elif mn.startswith('v_'):
            self.kind = 'valu'
            if mn.startswith('v_cmp'):
                self.wr = regs_of(ops[0]); self.rd = sum((regs_of(o) for o in ops[1:]), [])
            elif mn.startswith('v_permlane') and 'swap' in mn:
                self.wr = regs_of(ops[0]) + regs_of(ops[1]); self.rd = list(self.wr)
            else:
                self.wr = regs_of(ops[0]); self.rd = sum((regs_of(o) for o in ops[1:]), [])
                if mn.startswith(('v_fmac', 'v_dot2c', 'v_mac')) or 'dpp' in text or 'sdwa' in mn:
                    self.rd += self.wr
        elif mn.startswith('ds_'):
            self.kind = 'ds'
            if mn.startswith('ds_read') or mn.startswith('ds_bpermute') or mn.startswith('ds_swizzle'):
                self.wr = regs_of(ops[0]); self.rd = sum((regs_of(o) for o in ops[1:]), [])
                if 'd16' in mn: self.rd += self.wr
            else:
                self.rd = sum((regs_of(o) for o in ops), [])
            if 'addtid' in mn: self.rd.append(('m0', 0))
        elif mn.startswith('buffer_') or mn.startswith('global_'):
            self.kind = 'vmem'
            if 'load' in mn and not re.search(r'\blds\b', t):
                self.wr = regs_of(ops[0]); self.rd = sum((regs_of(o) for o in ops[1:]), [])
            else:
                self.rd = sum((regs_of(o) for o in ops), [])
                if re.search(r'\blds\b', t): self.rd.append(('m0', 0)); self.dma = True
        elif mn.startswith('s_'):
            self.kind = 'salu'
            if mn.startswith(('s_cmp', 's_bitcmp', 's_waitcnt', 's_barrier', 's_cbranch', 's_branch', 's_endpgm', 's_setprio', 's_sleep')):
                self.rd = sum((regs_of(o) for o in ops), []) if mn.startswith(('s_cmp','s_bitcmp')) else []
            else:
                self.wr = regs_of(ops[0]) if ops else []
                self.rd = sum((regs_of(o) for o in ops[1:]), [])

def check(lines, name=''):
    ins = []
    for l in lines:
        t = l.split(';')[0].strip()
        if not t or t.endswith(':') or t.startswith('.'):
            continue
        ins.append(I(l.strip()))
    errs = []
    n = len(ins)
    for i, c in enumerate(ins):
        dist = 0
        for k in range(i - 1, max(-1, i - 40), -1):
            p = ins[k]
            need = 0
            pw = set(p.wr); cr = set(c.rd); cw = set(c.wr)
            if p.kind == 'valu':
                vw = {r for r in pw if r[0] in 'va'}
                sw = {r for r in pw if r[0] == 's' or r[0] == 'vcc'}
                if c.kind == 'mfma' and vw & cr: need = max(need, 2)
                if c.mn.startswith('v_permlane') and vw & cr: need = max(need, 2)
                if c.mn.startswith(('v_readfirstlane', 'v_readlane')) and vw & cr: need = max(need, 1)
                if 'dpp' in c.text and vw & cr: need = max(need, 2)
                if c.kind == 'vmem' and sw & cr: need = max(need, 5)
                if c.kind == 'valu' and sw & cr: need = max(need, 2)
                if p.mn.startswith(TRANS) and c.kind in ('valu',) and not c.mn.startswith(TRANS) and vw & cr: need = max(need, 1)
            if p.kind == 'mfma':
                big = {8: 12, 4: 8}[p.passes]
                if c.kind in ('valu',) and pw & (cr | cw): need = max(need, big)
                if c.kind in ('ds', 'vmem') and pw & (cr | cw): need = max(need, big)
                if c.kind == 'mfma':
                    if pw & set(c.srcAB): need = max(need, big)
                    if pw & set(c.srcC) and (set(c.srcC) != pw or c.passes != p.passes): need = max(need, {8: 10, 4: 6}[p.passes])
                if c.kind == 'valu' and set(p.srcC) & cw: need = max(need, {8: 7, 4: 3}[p.passes])
            if p.kind == 'salu' and ('m0', 0) in pw and ('m0', 0) in cr and c.kind in ('ds', 'vmem'): need = max(need, 1)
            if p.kind == 'vmem' and 'store' in p.mn and ('x4' in p.mn or 'x3' in p.mn) and c.kind == 'valu' and set(p.rd) & cw: need = max(need, 2)
            if need > dist:
                errs.append(f'{name}: hazard need {need} have {dist}: [{p.text}] -> [{c.text}]')
            dist += p.states
            if dist > 24: break
    return errs
```

```python
import sys
import hazard

NAME = 'standalone__deep_cross_wide_deep__recsys'

PL = 16160
RED = 4 * PL
XW = RED + 25600
SMALL = RED + 98304
B1L = SMALL
W2L = SMALL + 256
FIN = 0
LDS_BYTES = 163840

RAW = 128
POOL = 96
OWN = 64
IDX = 56
GA = 52
V_W1OFF = 1
V_GCONST = 2
V_IDXB0 = 3
V_IDXB1 = 4
V_L16 = 7
V_TWR = 10
V_WIDE = 12
V_RW = 13
V_RR = 16
V_SM = 17
V_FW = 18
V_T0 = 20
EBUF = 96
TST = 128

S_W1 = 24; S_IDX = 28; S_TAB = 32; S_XW = 36; S_B1 = 40; S_W2 = 44; S_OUT = 48
S_W = 52; S_SELE = 53; S_SELO = 54; S_IT = 55; S_BASE = 56; S_OFF = 57
S_EXTRA = 61; S_SELX = 62; S_T = 63; S_T2 = 74; S_T3 = 75; S_W0 = 76; S_W1B = 77; S_IDXO = 78
S_WW = 64
S_BW = 72; S_B2 = 73
S_WWF = 80

def accreg(m, q):
    if m == 0 and q == 0: return ('v', OWN)
    if m == 0 and q == 2: return ('v', OWN + 16)
    table = {(1, 0): 0, (0, 1): 16, (1, 1): 32, (1, 2): 48, (0, 3): 64, (1, 3): 80}
    return ('a', table[(m, q)])

def rng(kind, base, n):
    return f'{kind}[{base}:{base + n - 1}]'

class Asm:
    def __init__(self):
        self.lines = []
    def __call__(self, s):
        for l in s.strip('\n').split('\n'):
            self.lines.append('    ' + l.strip() if not l.strip().endswith(':') else l.strip())
    def label(self, s):
        self.lines.append(s + ':')

def raw(j, r, p):
    return RAW + 32 * j + 4 * r + p

def prep_list(j, x, pool):
    out = []
    pb = POOL + 16 * pool
    for t in range(4):
        out.append(f'v_permlane16_swap_b32 v{raw(j,2*t,x)}, v{raw(j,2*t,x+2)}')
        out.append(f'v_permlane16_swap_b32 v{raw(j,2*t+1,x)}, v{raw(j,2*t+1,x+2)}')
        out.append(f'v_perm_b32 v{pb+t}, v{raw(j,2*t+1,x)}, v{raw(j,2*t,x)}, s{S_SELE}')
        out.append(f'v_perm_b32 v{pb+4+t}, v{raw(j,2*t+1,x)}, v{raw(j,2*t,x)}, s{S_SELO}')
    for t in range(4):
        out.append(f'v_perm_b32 v{pb+8+t}, v{raw(j,2*t+1,x+2)}, v{raw(j,2*t,x+2)}, s{S_SELE}')
    for t in range(4):
        out.append(f'v_perm_b32 v{pb+12+t}, v{raw(j,2*t+1,x+2)}, v{raw(j,2*t,x+2)}, s{S_SELO}')
    return out

def mfma_list(x, pool, eb):
    out = []
    pb = POOL + 16 * pool
    for fi, (sg, par) in enumerate([(0, 0), (0, 1), (1, 0), (1, 1)]):
        q = 2 * x + par
        for m in range(2):
            k, b = accreg(m, q)
            e = EBUF + 16 * eb + 8 * m + 4 * sg
            out.append(f'v_mfma_f32_32x32x16_bf16 {rng(k,b,16)}, {rng("v",pb+4*fi,4)}, {rng("a",e,4)}, {rng(k,b,16)}')
    return out

def w1_loads(j, rs, soff):
    return [f'buffer_load_dwordx4 {rng("v",raw(j,r,0),4)}, v{V_W1OFF}, {rng("s",S_W1,4)}, s{soff} offen offset:{256*r}' for r in rs]

def gather_list(jf, eb):
    out = []
    for m in range(2):
        out.append(f'v_lshl_add_u32 v{GA+m}, v{IDX+4*m+jf}, 4, v{V_GCONST}')
    for sg in range(2):
        for m in range(2):
            e = EBUF + 16 * eb + 8 * m + 4 * sg
            out.append(f'ds_read_b128 {rng("a",e,4)}, v{GA+m} offset:{2*PL*sg}')
    return out

def merge(streams):
    items = []
    for si, (lst, t0, t1) in enumerate(streams):
        n = len(lst)
        for i, it in enumerate(lst):
            items.append((t0 + (t1 - t0) * (i + 0.5) / n, si, i, it))
    items.sort(key=lambda z: (z[0], z[1], z[2]))
    return items

def interleave(a, mfmas, streams, pre=()):
    for p in pre: a(p)
    items = merge(streams)
    n = len(mfmas)
    ii = 0
    for k, mf in enumerate(mfmas):
        a(mf)
        tend = (k + 1) / n
        while ii < len(items) and items[ii][0] < tend:
            a(items[ii][3]); ii += 1
    while ii < len(items):
        a(items[ii][3]); ii += 1

def build():
    a = Asm()
    a(f'''
    s_cmp_ge_u32 s2, 256
    s_cbranch_scc1 L_end
    s_load_dwordx16 s[4:19], s[0:1], 0
    s_load_dwordx4 s[20:23], s[0:1], 64
    v_lshrrev_b32 v1, 6, v0
    v_and_b32 v0, 63, v0
    v_readfirstlane_b32 s{S_W}, v1
    v_lshlrev_b32 v{V_L16}, 4, v0
    v_and_b32 v1, 15, v0
    v_lshlrev_b32 v1, 4, v1
    v_bfe_u32 v8, v0, 4, 1
    v_lshl_add_u32 v1, v8, 12, v1
    v_lshrrev_b32 v9, 5, v0
    v_lshl_add_u32 v{V_W1OFF}, v9, 11, v1
    v_mul_u32_u24 v{V_GCONST}, {PL}, v9
    v_and_b32 v10, 3, v0
    v_mul_u32_u24 v10, {PL}, v10
    v_lshrrev_b32 v11, 2, v0
    v_lshl_add_u32 v10, v11, 4, v10
    s_lshl_b32 s{S_T}, s{S_W}, 12
    v_add_u32 v{V_TWR}, s{S_T}, v10
    s_and_b32 s{S_W0}, s{S_W}, 1
    s_lshr_b32 s{S_W1B}, s{S_W}, 1
    v_and_b32 v11, 31, v0
    v_mul_u32_u24 v5, 400, v11
    s_mul_i32 s{S_T}, s{S_W0}, 12800
    s_add_u32 s{S_T2}, s{S_T}, {RED}
    v_add_u32 v{V_IDXB0}, s{S_T2}, v5
    s_sub_u32 s{S_T2}, {RED + 12800}, s{S_T}
    v_add_u32 v{V_IDXB1}, s{S_T2}, v5
    s_mul_i32 s{S_T}, s{S_W1B}, 0x02020202
    s_add_u32 s{S_SELE}, s{S_T}, 0x05040100
    s_sub_u32 s{S_SELO}, 0x07060302, s{S_T}
    s_mul_i32 s{S_T}, s{S_W1B}, 0x02020000
    s_add_u32 s{S_SELX}, s{S_T}, 0x01000c0c
    s_lshr_b32 s{S_T}, s2, 3
    s_mul_i32 s{S_T2}, s{S_T}, 43
    s_lshr_b32 s{S_T2}, s{S_T2}, 8
    s_mul_i32 s{S_T2}, s{S_T2}, 6
    s_sub_u32 s{S_T}, s{S_T}, s{S_T2}
    s_lshl_b32 s{S_T}, s{S_T}, 17
    s_lshl_b32 s{S_T2}, s{S_W}, 15
    s_add_u32 s{S_BASE}, s{S_T}, s{S_T2}
    s_add_u32 s{S_EXTRA}, s{S_W}, 96
    s_lshl_b32 s{S_EXTRA}, s{S_EXTRA}, 13
    s_mov_b32 s{S_IT}, 0
    s_mul_i32 s{S_T3}, s2, 25600
    s_mul_i32 s{S_T}, s{S_W}, 6144
    s_mov_b32 s{S_IDX+2}, 25600
    s_mov_b32 s{S_IDX+3}, 0x20000
    s_mov_b32 s{S_TAB+2}, 64000
    s_mov_b32 s{S_TAB+3}, 0x20000
    s_mov_b32 s{S_W1+2}, 819200
    s_mov_b32 s{S_W1+3}, 0x20000
    s_add_u32 m0, s{S_T}, {RED}
    s_waitcnt lgkmcnt(0)
    s_add_u32 s{S_IDX}, s4, s{S_T3}
    s_addc_u32 s{S_IDX+1}, s5, 0
    s_mov_b32 s{S_TAB}, s6
    s_mov_b32 s{S_TAB+1}, s7
    ''')
    ix = f'v{V_L16}, {rng("s",S_IDX,4)}, s{S_T} offen'
    a(f'''
    buffer_load_dwordx4 {ix} lds
    buffer_load_dwordx4 {ix} offset:1024 lds
    buffer_load_dwordx4 {ix} offset:2048 lds
    buffer_load_dwordx4 {ix} offset:3072 lds
    s_add_u32 s{S_T}, s{S_T}, 4096
    s_add_u32 m0, s{S_T}, {RED}
    s_mov_b32 s{S_W1}, s14
    buffer_load_dwordx4 {ix} lds
    buffer_load_dwordx4 {ix} offset:1024 lds
    s_cmp_eq_u32 s{S_W}, 3
    s_cbranch_scc0 L_noidx7
    buffer_load_dwordx4 {ix} offset:2048 lds
    L_noidx7:
    s_mov_b32 s{S_W1+1}, s15
    s_cmp_eq_u32 s{S_W}, 0
    s_cbranch_scc0 L_noxw
    s_mul_i32 s{S_T3}, s2, 1664
    s_add_u32 s{S_XW}, s8, s{S_T3}
    s_addc_u32 s{S_XW+1}, s9, 0
    s_mov_b32 s{S_XW+2}, 1664
    s_mov_b32 s{S_XW+3}, 0x20000
    s_mov_b32 m0, {XW}
    s_load_dwordx8 s[{S_WW}:{S_WW+7}], s[10:11], 0
    s_load_dword s{S_BW}, s[12:13], 0
    s_load_dword s{S_B2}, s[20:21], 0
    buffer_load_dwordx4 v{V_L16}, {rng("s",S_XW,4)}, 0 offen lds
    buffer_load_dwordx4 v{V_L16}, {rng("s",S_XW,4)}, 0 offen offset:1024 lds
    L_noxw:
    s_cmp_eq_u32 s{S_W}, 1
    s_cbranch_scc0 L_nosm
    s_mov_b32 s{S_B1}, s16
    s_mov_b32 s{S_B1+1}, s17
    s_mov_b32 s{S_B1+2}, 256
    s_mov_b32 s{S_B1+3}, 0x20000
    s_mov_b32 s{S_W2}, s18
    s_mov_b32 s{S_W2+1}, s19
    s_mov_b32 s{S_W2+2}, 256
    s_mov_b32 s{S_W2+3}, 0x20000
    s_mov_b32 m0, {B1L}
    s_mov_b64 exec, 0xffff
    buffer_load_dwordx4 v{V_L16}, {rng("s",S_B1,4)}, 0 offen lds
    s_mov_b32 m0, {W2L}
    s_nop 0
    buffer_load_dwordx4 v{V_L16}, {rng("s",S_W2,4)}, 0 offen lds
    s_mov_b64 exec, -1
    L_nosm:
    s_lshl_b32 s{S_T}, s{S_W}, 14
    ''')
    for k in range(16):
        if k and k % 4 == 0:
            a(f's_add_u32 s{S_T}, s{S_T}, 4096')
        a(f'buffer_load_dwordx4 {rng("a",TST+4*k,4)}, v{V_L16}, {rng("s",S_TAB,4)}, s{S_T} offen offset:{1024*(k%4)}')
    a(f'''
    s_add_u32 s{S_OFF+1}, s{S_BASE}, 8192
    s_add_u32 s{S_OFF+2}, s{S_BASE}, 16384
    s_add_u32 s{S_OFF+3}, s{S_BASE}, 24576
    ''')
    for l in w1_loads(0, range(8), S_BASE): a(l)
    for l in w1_loads(1, range(8), S_OFF + 1): a(l)
    for l in w1_loads(2, range(8), S_OFF + 2): a(l)
    for l in w1_loads(3, range(4), S_OFF + 3): a(l)
    a(f'''
    s_mov_b32 s{S_OUT}, s22
    s_mov_b32 s{S_OUT+1}, s23
    s_mov_b32 s{S_OUT+2}, 32768
    s_mov_b32 s{S_OUT+3}, 0x20000
    ''')
    for i in range(96):
        a(f'v_accvgpr_write_b32 a{i}, 0')
    for d in (1, 2, 3):
        a(f'''
        s_xor_b32 s{S_T}, s{S_W}, {d}
        s_mul_i32 s{S_T}, s{S_T}, 24576
        s_add_u32 s{S_T}, s{S_T}, {RED + (d-1)*8192}
        v_add_u32 v{V_RW+d-1}, s{S_T}, v{V_L16}
        ''')
    a(f'''
    s_mul_i32 s{S_T}, s{S_W}, 24576
    s_add_u32 s{S_T}, s{S_T}, {RED}
    v_add_u32 v{V_RR}, s{S_T}, v{V_L16}
    v_lshlrev_b32 v{V_SM}, 6, v9
    v_add_u32 v{V_SM}, {SMALL}, v{V_SM}
    s_lshl_b32 s{S_T}, s{S_W0}, 9
    s_lshl_b32 s{S_T2}, s{S_W1B}, 3
    s_add_u32 s{S_T}, s{S_T}, s{S_T2}
    v_lshlrev_b32 v{V_FW}, 4, v11
    v_lshl_add_u32 v{V_FW}, v9, 2, v{V_FW}
    v_add_u32 v{V_FW}, s{S_T}, v{V_FW}
    s_lshr_b32 s{S_IDXO}, s{S_BASE}, 11
    v_add_u32 v{GA}, s{S_IDXO}, v{V_IDXB0}
    v_add_u32 v{GA+1}, s{S_IDXO}, v{V_IDXB1}
    s_lshl_b32 s{S_T}, s{S_W}, 2
    s_add_u32 s{S_T}, s{S_T}, 384
    v_add_u32 v{GA+2}, s{S_T}, v{V_IDXB0}
    v_add_u32 v{GA+3}, s{S_T}, v{V_IDXB1}
    ''')
    for k in range(16):
        a(f's_waitcnt vmcnt({43-k})')
        if k == 15:
            a(f'''
            s_cmp_eq_u32 s{S_W}, 3
            s_cbranch_scc1 L_notw
            ''')
        a(f'ds_write_b128 v{V_TWR}, {rng("a",TST+4*k,4)} offset:{256*k}')
    a(f'''
    L_notw:
    s_waitcnt lgkmcnt(0)
    s_barrier
    ds_read_b128 {rng("v",IDX,4)}, v{GA}
    ds_read_b128 {rng("v",IDX+4,4)}, v{GA+1}
    ds_read_b32 v{V_T0}, v{GA+2}
    ds_read_b32 v{V_T0+1}, v{GA+3}
    ''')
    for e in range(8):
        a(f'ds_read_b128 {rng("v",POOL+4*e,4)}, v{V_SM} offset:{16*(e&3)+128*(e>>2)}')
    a(f'''
    s_waitcnt lgkmcnt(8)
    ds_write_b32 v{GA}, v{V_T0}
    ds_write_b32 v{GA+1}, v{V_T0+1}
    ''')
    a('s_nop 0')
    for l in gather_list(0, 0): a(l)
    a('s_waitcnt lgkmcnt(6)')
    for xp in range(2):
        for rho in range(16):
            src = POOL + 4 * (rho & 7) + 2 * (rho >> 3) + xp
            a(f'v_perm_b32 v{OWN+16*xp+rho}, v{src}, v{src}, s{S_SELX}')
    a(f'''
    s_cmp_eq_u32 s{S_W}, 0
    s_cbranch_scc0 L_nowide
    v_mul_u32_u24 v{V_T0}, 26, v0
    v_add_u32 v{V_T0}, {XW}, v{V_T0}
    ''')
    for j in range(13):
        a(f'ds_read_u16 v{V_T0+2+j}, v{V_T0} offset:{2*j}')
    for j in range(13):
        if j % 2 == 0: a(f's_lshl_b32 s{S_WWF+j}, s{S_WW+j//2}, 16')
        else: a(f's_and_b32 s{S_WWF+j}, s{S_WW+j//2}, 0xffff0000')
    a(f'''
    v_mov_b32 v{V_WIDE}, 0
    s_waitcnt lgkmcnt(0)
    ''')
    for j in range(13):
        a(f'v_lshlrev_b32 v{V_T0+2+j}, 16, v{V_T0+2+j}')
    for j in range(13):
        a(f'v_fmac_f32 v{V_WIDE}, s{S_WWF+j}, v{V_T0+2+j}')
    a('L_nowide:')
    a('s_waitcnt vmcnt(20)')
    for l in prep_list(0, 0, 0): a(l)
    a('s_nop 1')
    pro_end = len(a.lines)
    a.label('L_loop')
    loop_start = len(a.lines)
    for j in range(4):
        streams = [(prep_list(j, 1, 1), 0.0, 0.9),
                   (w1_loads((j - 1) % 4, range(4, 8), S_OFF + (j - 1) % 4), 0.0, 1.0),
                   (gather_list((j + 1) % 4, (j + 1) % 2), 0.0, 0.6)]
        if j == 2:
            streams.append(([f'v_add_u32 v{GA+2}, s{S_IDXO}, v{V_IDXB0}',
                             f'v_add_u32 v{GA+3}, s{S_IDXO}, v{V_IDXB1}',
                             f'ds_read_b128 {rng("v",IDX,4)}, v{GA+2}',
                             f'ds_read_b128 {rng("v",IDX+4,4)}, v{GA+3}'], 0.62, 0.95))
        interleave(a, mfma_list(0, 0, j % 2), streams, pre=['s_waitcnt lgkmcnt(0)'])
        pre = []
        streams = [(['s_waitcnt vmcnt(16)'] + prep_list((j + 1) % 4, 0, 0), 0.0, 0.9),
                   (w1_loads(j, range(0, 4), S_OFF + j), 0.12 if j == 0 else 0.05, 1.0)]
        if j == 0:
            pre = [f's_add_u32 s{S_BASE}, s{S_BASE}, 0x20000',
                   f's_sub_u32 s{S_T}, s{S_BASE}, 0xc0000',
                   f's_cmp_ge_u32 s{S_BASE}, 0xc0000',
                   f's_cselect_b32 s{S_BASE}, s{S_T}, s{S_BASE}',
                   f's_cmp_eq_u32 s{S_IT}, 5',
                   f's_cselect_b32 s{S_OFF}, s{S_EXTRA}, s{S_BASE}',
                   f's_cselect_b32 s{S_T}, 0x7ff00000, s{S_BASE}']
            streams.append(([f's_add_u32 s{S_OFF+1}, s{S_T}, 8192',
                             f's_add_u32 s{S_OFF+2}, s{S_T}, 16384',
                             f's_add_u32 s{S_OFF+3}, s{S_T}, 24576',
                             f's_lshr_b32 s{S_IDXO}, s{S_BASE}, 11',
                             f's_add_u32 s{S_IT}, s{S_IT}, 1'], 0.3, 0.9))
        if j == 3:
            streams.append(([f's_cmp_lt_u32 s{S_IT}, 6'], 0.95, 1.0))
        interleave(a, mfma_list(1, 1, j % 2), streams, pre=pre)
    a('s_cbranch_scc1 L_loop')
    loop_end = len(a.lines)
    interleave(a, mfma_list(0, 0, 0), [(prep_list(0, 1, 1), 0.0, 0.9)], pre=['s_waitcnt lgkmcnt(0)'])
    def red_writes(m, q):
        k, b = accreg(m, q)
        d = m + 2 * (q & 1)
        return [f'ds_write_b128 v{V_RW+d-1}, {rng(k,b+4*i,4)} offset:{(q>>1)*4096+i*1024}' for i in range(4)]
    mf = mfma_list(1, 1, 0)
    a('s_barrier')
    a(mf[0]); a('s_nop 3'); a(mf[1]); a('s_nop 3')
    wr = red_writes(1, 0) + red_writes(0, 1) + red_writes(1, 1)
    for k in range(6):
        a(mf[2 + k])
        a(wr[2 * k]); a(wr[2 * k + 1])
    for e in range(8):
        a(f'ds_read_b128 {rng("v",RAW+4*e,4)}, v{V_SM} offset:{256+16*(e&3)+128*(e>>2)}')
    a('s_nop 1')
    for l in red_writes(1, 2) + red_writes(0, 3) + red_writes(1, 3): a(l)
    a('s_waitcnt lgkmcnt(12)')
    W2R = POOL
    for xp in range(2):
        for rho in range(16):
            src = RAW + 4 * (rho & 7) + 2 * (rho >> 3) + xp
            a(f'v_perm_b32 v{W2R+16*xp+rho}, v{src}, v{src}, s{S_SELX}')
    a('''
    s_waitcnt vmcnt(0) lgkmcnt(0)
    s_barrier
    ''')
    for d in range(3):
        for i in range(8):
            a(f'ds_read_b128 {rng("v",RAW+32*d+4*i,4)}, v{V_RR} offset:{d*8192+i*1024}')
    for d in range(3):
        for half in range(2):
            rem = 24 - (d * 8 + half * 4 + 4)
            a(f's_waitcnt lgkmcnt({min(rem,15)})')
            for r in range(16):
                rr = half * 16 + r
                a(f'v_add_f32 v{OWN+rr}, v{OWN+rr}, v{RAW+32*d+rr}')
    for r in range(32):
        a(f'v_max_f32 v{OWN+r}, 0, v{OWN+r}')
    for r in range(32):
        c = V_T0 + (r & 3)
        if r < 4: a(f'v_mul_f32 v{c}, v{OWN+r}, v{W2R+r}')
        else: a(f'v_fmac_f32 v{c}, v{OWN+r}, v{W2R+r}')
    a(f'''
    v_add_f32 v{V_T0}, v{V_T0}, v{V_T0+1}
    v_add_f32 v{V_T0+2}, v{V_T0+2}, v{V_T0+3}
    v_add_f32 v{V_T0}, v{V_T0}, v{V_T0+2}
    ds_write_b32 v{V_FW}, v{V_T0} offset:{FIN}
    s_waitcnt lgkmcnt(0)
    s_barrier
    s_cmp_eq_u32 s{S_W}, 0
    s_cbranch_scc0 L_end
    ds_read_b128 {rng("v",V_T0+4,4)}, v{V_L16} offset:{FIN}
    s_lshl_b32 s{S_BW}, s{S_BW}, 16
    s_lshl_b32 s{S_B2}, s{S_B2}, 16
    v_cvt_pk_bf16_f32 v{V_WIDE}, v{V_WIDE}, v{V_WIDE}
    v_lshlrev_b32 v{V_WIDE}, 16, v{V_WIDE}
    v_add_f32 v{V_WIDE}, s{S_BW}, v{V_WIDE}
    v_cvt_pk_bf16_f32 v{V_WIDE}, v{V_WIDE}, v{V_WIDE}
    v_lshlrev_b32 v{V_WIDE}, 16, v{V_WIDE}
    s_lshl_b32 s{S_T}, s2, 7
    v_lshlrev_b32 v{V_T0+1}, 1, v0
    s_waitcnt lgkmcnt(0)
    v_add_f32 v{V_T0+4}, v{V_T0+4}, v{V_T0+5}
    v_add_f32 v{V_T0+6}, v{V_T0+6}, v{V_T0+7}
    v_add_f32 v{V_T0}, v{V_T0+4}, v{V_T0+6}
    v_cvt_pk_bf16_f32 v{V_T0}, v{V_T0}, v{V_T0}
    v_lshlrev_b32 v{V_T0}, 16, v{V_T0}
    v_add_f32 v{V_T0}, s{S_B2}, v{V_T0}
    v_cvt_pk_bf16_f32 v{V_T0}, v{V_T0}, v{V_T0}
    v_lshlrev_b32 v{V_T0}, 16, v{V_T0}
    v_add_f32 v{V_T0}, v{V_WIDE}, v{V_T0}
    v_cvt_pk_bf16_f32 v{V_T0}, v{V_T0}, v{V_T0}
    v_lshlrev_b32 v{V_T0}, 16, v{V_T0}
    v_mul_f32 v{V_T0}, 0xbfb8aa3b, v{V_T0}
    v_exp_f32 v{V_T0}, v{V_T0}
    s_nop 0
    v_add_f32 v{V_T0}, 1.0, v{V_T0}
    v_rcp_f32 v{V_T0}, v{V_T0}
    s_nop 0
    v_cvt_pk_bf16_f32 v{V_T0}, v{V_T0}, v{V_T0}
    buffer_store_short v{V_T0}, v{V_T0+1}, {rng("s",S_OUT,4)}, s{S_T} offen
    L_end:
    s_endpgm
    ''')
    L = a.lines
    errs = hazard.check(L, 'linear')
    errs += hazard.check(L[loop_start:loop_end] + L[loop_start:loop_end], 'backedge')
    return L, errs

HEADER = open('cdna_kernels/' + NAME + '.s.ref').read().split('; Override launch')[0]

def main():
    L, errs = build()
    for e in errs: print(e, file=sys.stderr)
    out = HEADER
    out += f'; @launch grid=(256,1,1) block=(256,1,1) lds={LDS_BYTES}\n'
    out += f'''.amdgcn_target "amdgcn-amd-amdhsa--gfx950"
.text
.globl {NAME}_kernel
.p2align 8
.type {NAME}_kernel,@function
{NAME}_kernel:
'''
    out += '\n'.join(L) + '\n'
    out += f'''.section .rodata,"a"
.p2align 6
.amdhsa_kernel {NAME}_kernel
  .amdhsa_next_free_vgpr 512
  .amdhsa_next_free_sgpr 102
  .amdhsa_accum_offset 256
  .amdhsa_group_segment_fixed_size 0
  .amdhsa_kernarg_size 96
  .amdhsa_user_sgpr_count 2
  .amdhsa_user_sgpr_kernarg_segment_ptr 1
  .amdhsa_system_sgpr_workgroup_id_x 1
.end_amdhsa_kernel
'''
    path = sys.argv[1] if len(sys.argv) > 1 else 'cdna_kernels/' + NAME + '.s'
    open(path, 'w').write(out)
    print('wrote', path, len(L), 'lines;', len(errs), 'hazards')

if __name__ == '__main__':
    main()
```

```python
import sys
import hazard

NAME = 'standalone__deep_cross_wide_deep__recsys'

PL = 16160
RED = 4 * PL
XW = RED + 25600
SMALL = RED + 98304
B1L = SMALL
W2L = SMALL + 256
FIN = 0
LDS_BYTES = 163840

RAW = 128
POOL = 96
OWN = 64
IDX = 56
GA = 52
V_W1OFF = 1
V_GCONST = 2
V_IDXB0 = 3
V_IDXB1 = 4
V_L16 = 7
V_TWR = 10
V_WIDE = 12
V_RW = 13
V_RR = 16
V_SM = 17
V_FW = 18
V_T0 = 20
EBUF = 96
TST = 128

S_W1 = 24; S_IDX = 28; S_TAB = 32; S_XW = 36; S_B1 = 40; S_W2 = 44; S_OUT = 48
S_W = 52; S_SELE = 53; S_SELO = 54; S_IT = 55; S_BASE = 56; S_OFF = 57
S_EXTRA = 61; S_SELX = 62; S_T = 63; S_T2 = 74; S_T3 = 75; S_W0 = 76; S_W1B = 77; S_IDXO = 78
S_WW = 64
S_BW = 72; S_B2 = 73
S_WWF = 80

def accreg(m, q):
    if m == 0 and q == 0: return ('v', OWN)
    if m == 0 and q == 2: return ('v', OWN + 16)
    table = {(1, 0): 0, (0, 1): 16, (1, 1): 32, (1, 2): 48, (0, 3): 64, (1, 3): 80}
    return ('a', table[(m, q)])

def rng(kind, base, n):
    return f'{kind}[{base}:{base + n - 1}]'

class Asm:
    def __init__(self):
        self.lines = []
    def __call__(self, s):
        for l in s.strip('\n').split('\n'):
            self.lines.append('    ' + l.strip() if not l.strip().endswith(':') else l.strip())
    def label(self, s):
        self.lines.append(s + ':')

def raw(j, r, p):
    return RAW + 32 * j + 4 * r + p

def prep_list(j, x, pool):
    out = []
    pb = POOL + 16 * pool
    for t in range(4):
        out.append(f'v_permlane16_swap_b32 v{raw(j,2*t,x)}, v{raw(j,2*t,x+2)}')
        out.append(f'v_permlane16_swap_b32 v{raw(j,2*t+1,x)}, v{raw(j,2*t+1,x+2)}')
        out.append(f'v_perm_b32 v{pb+t}, v{raw(j,2*t+1,x)}, v{raw(j,2*t,x)}, s{S_SELE}')
        out.append(f'v_perm_b32 v{pb+4+t}, v{raw(j,2*t+1,x)}, v{raw(j,2*t,x)}, s{S_SELO}')
    for t in range(4):
        out.append(f'v_perm_b32 v{pb+8+t}, v{raw(j,2*t+1,x+2)}, v{raw(j,2*t,x+2)}, s{S_SELE}')
    for t in range(4):
        out.append(f'v_perm_b32 v{pb+12+t}, v{raw(j,2*t+1,x+2)}, v{raw(j,2*t,x+2)}, s{S_SELO}')
    return out

def mfma_list(x, pool, eb):
    out = []
    pb = POOL + 16 * pool
    for fi, (sg, par) in enumerate([(0, 0), (0, 1), (1, 0), (1, 1)]):
        q = 2 * x + par
        for m in range(2):
            k, b = accreg(m, q)
            e = EBUF + 16 * eb + 8 * m + 4 * sg
            out.append(f'v_mfma_f32_32x32x16_bf16 {rng(k,b,16)}, {rng("v",pb+4*fi,4)}, {rng("a",e,4)}, {rng(k,b,16)}')
    return out

def w1_loads(j, rs, soff):
    return [f'buffer_load_dwordx4 {rng("v",raw(j,r,0),4)}, v{V_W1OFF}, {rng("s",S_W1,4)}, s{soff} offen offset:{256*r}' for r in rs]

def gather_list(jf, eb):
    out = []
    for m in range(2):
        out.append(f'v_lshl_add_u32 v{GA+m}, v{IDX+4*m+jf}, 4, v{V_GCONST}')
    for sg in range(2):
        for m in range(2):
            e = EBUF + 16 * eb + 8 * m + 4 * sg
            out.append(f'ds_read_b128 {rng("a",e,4)}, v{GA+m} offset:{2*PL*sg}')
    return out

def merge(streams):
    items = []
    for si, (lst, t0, t1) in enumerate(streams):
        n = len(lst)
        for i, it in enumerate(lst):
            items.append((t0 + (t1 - t0) * (i + 0.5) / n, si, i, it))
    items.sort(key=lambda z: (z[0], z[1], z[2]))
    return items

def interleave(a, mfmas, streams, pre=()):
    for p in pre: a(p)
    items = merge(streams)
    n = len(mfmas)
    ii = 0
    for k, mf in enumerate(mfmas):
        a(mf)
        tend = (k + 1) / n
        while ii < len(items) and items[ii][0] < tend:
            a(items[ii][3]); ii += 1
    while ii < len(items):
        a(items[ii][3]); ii += 1

DEBUG = False
NSTAMP = [0]
def stamp(a):
    if not DEBUG: return
    k = NSTAMP[0]; NSTAMP[0] += 1
    a(f'''
    s_memrealtime s[94:95]
    s_memtime s[96:97]
    s_waitcnt lgkmcnt(0)
    v_writelane_b32 v19, s94, {4*k}
    v_writelane_b32 v19, s95, {4*k+1}
    v_writelane_b32 v19, s96, {4*k+2}
    v_writelane_b32 v19, s97, {4*k+3}
    ''')

def build():
    a = Asm()
    a(f'''
    s_cmp_ge_u32 s2, 256
    s_cbranch_scc1 L_end
    ''')
    stamp(a)
    if DEBUG: a('s_load_dwordx2 s[98:99], s[0:1], 88')
    a(f'''
    s_load_dwordx16 s[4:19], s[0:1], 0
    s_load_dwordx4 s[20:23], s[0:1], 64
    v_lshrrev_b32 v1, 6, v0
    v_and_b32 v0, 63, v0
    v_readfirstlane_b32 s{S_W}, v1
    v_lshlrev_b32 v{V_L16}, 4, v0
    v_and_b32 v1, 15, v0
    v_lshlrev_b32 v1, 4, v1
    v_bfe_u32 v8, v0, 4, 1
    v_lshl_add_u32 v1, v8, 12, v1
    v_lshrrev_b32 v9, 5, v0
    v_lshl_add_u32 v{V_W1OFF}, v9, 11, v1
    v_mul_u32_u24 v{V_GCONST}, {PL}, v9
    v_and_b32 v10, 3, v0
    v_mul_u32_u24 v10, {PL}, v10
    v_lshrrev_b32 v11, 2, v0
    v_lshl_add_u32 v10, v11, 4, v10
    s_lshl_b32 s{S_T}, s{S_W}, 12
    v_add_u32 v{V_TWR}, s{S_T}, v10
    s_and_b32 s{S_W0}, s{S_W}, 1
    s_lshr_b32 s{S_W1B}, s{S_W}, 1
    v_and_b32 v11, 31, v0
    v_mul_u32_u24 v5, 400, v11
    s_mul_i32 s{S_T}, s{S_W0}, 12800
    s_add_u32 s{S_T2}, s{S_T}, {RED}
    v_add_u32 v{V_IDXB0}, s{S_T2}, v5
    s_sub_u32 s{S_T2}, {RED + 12800}, s{S_T}
    v_add_u32 v{V_IDXB1}, s{S_T2}, v5
    s_mul_i32 s{S_T}, s{S_W1B}, 0x02020202
    s_add_u32 s{S_SELE}, s{S_T}, 0x05040100
    s_sub_u32 s{S_SELO}, 0x07060302, s{S_T}
    s_mul_i32 s{S_T}, s{S_W1B}, 0x02020000
    s_add_u32 s{S_SELX}, s{S_T}, 0x01000c0c
    s_lshr_b32 s{S_T}, s2, 3
    s_mul_i32 s{S_T2}, s{S_T}, 43
    s_lshr_b32 s{S_T2}, s{S_T2}, 8
    s_mul_i32 s{S_T2}, s{S_T2}, 6
    s_sub_u32 s{S_T}, s{S_T}, s{S_T2}
    s_lshl_b32 s{S_T}, s{S_T}, 17
    s_lshl_b32 s{S_T2}, s{S_W}, 15
    s_add_u32 s{S_BASE}, s{S_T}, s{S_T2}
    s_add_u32 s{S_EXTRA}, s{S_W}, 96
    s_lshl_b32 s{S_EXTRA}, s{S_EXTRA}, 13
    s_mov_b32 s{S_IT}, 0
    s_mul_i32 s{S_T3}, s2, 25600
    s_mul_i32 s{S_T}, s{S_W}, 6144
    s_mov_b32 s{S_IDX+2}, 25600
    s_mov_b32 s{S_IDX+3}, 0x20000
    s_mov_b32 s{S_TAB+2}, 64000
    s_mov_b32 s{S_TAB+3}, 0x20000
    s_mov_b32 s{S_W1+2}, 819200
    s_mov_b32 s{S_W1+3}, 0x20000
    s_add_u32 m0, s{S_T}, {RED}
    s_waitcnt lgkmcnt(0)
    s_add_u32 s{S_IDX}, s4, s{S_T3}
    s_addc_u32 s{S_IDX+1}, s5, 0
    s_mov_b32 s{S_TAB}, s6
    s_mov_b32 s{S_TAB+1}, s7
    ''')
    stamp(a)
    ix = f'v{V_L16}, {rng("s",S_IDX,4)}, s{S_T} offen'
    a(f'''
    buffer_load_dwordx4 {ix} lds
    buffer_load_dwordx4 {ix} offset:1024 lds
    buffer_load_dwordx4 {ix} offset:2048 lds
    buffer_load_dwordx4 {ix} offset:3072 lds
    s_add_u32 s{S_T}, s{S_T}, 4096
    s_add_u32 m0, s{S_T}, {RED}
    s_mov_b32 s{S_W1}, s14
    buffer_load_dwordx4 {ix} lds
    buffer_load_dwordx4 {ix} offset:1024 lds
    s_cmp_eq_u32 s{S_W}, 3
    s_cbranch_scc0 L_noidx7
    buffer_load_dwordx4 {ix} offset:2048 lds
    L_noidx7:
    s_mov_b32 s{S_W1+1}, s15
    s_cmp_eq_u32 s{S_W}, 0
    s_cbranch_scc0 L_noxw
    s_mul_i32 s{S_T3}, s2, 1664
    s_add_u32 s{S_XW}, s8, s{S_T3}
    s_addc_u32 s{S_XW+1}, s9, 0
    s_mov_b32 s{S_XW+2}, 1664
    s_mov_b32 s{S_XW+3}, 0x20000
    s_mov_b32 m0, {XW}
    s_load_dwordx8 s[{S_WW}:{S_WW+7}], s[10:11], 0
    s_load_dword s{S_BW}, s[12:13], 0
    s_load_dword s{S_B2}, s[20:21], 0
    buffer_load_dwordx4 v{V_L16}, {rng("s",S_XW,4)}, 0 offen lds
    buffer_load_dwordx4 v{V_L16}, {rng("s",S_XW,4)}, 0 offen offset:1024 lds
    L_noxw:
    s_cmp_eq_u32 s{S_W}, 1
    s_cbranch_scc0 L_nosm
    s_mov_b32 s{S_B1}, s16
    s_mov_b32 s{S_B1+1}, s17
    s_mov_b32 s{S_B1+2}, 256
    s_mov_b32 s{S_B1+3}, 0x20000
    s_mov_b32 s{S_W2}, s18
    s_mov_b32 s{S_W2+1}, s19
    s_mov_b32 s{S_W2+2}, 256
    s_mov_b32 s{S_W2+3}, 0x20000
    s_mov_b32 m0, {B1L}
    s_mov_b64 exec, 0xffff
    buffer_load_dwordx4 v{V_L16}, {rng("s",S_B1,4)}, 0 offen lds
    s_mov_b32 m0, {W2L}
    s_nop 0
    buffer_load_dwordx4 v{V_L16}, {rng("s",S_W2,4)}, 0 offen lds
    s_mov_b64 exec, -1
    L_nosm:
    s_lshl_b32 s{S_T}, s{S_W}, 14
    ''')
    for k in range(16):
        if k and k % 4 == 0:
            a(f's_add_u32 s{S_T}, s{S_T}, 4096')
        a(f'buffer_load_dwordx4 {rng("a",TST+4*k,4)}, v{V_L16}, {rng("s",S_TAB,4)}, s{S_T} offen offset:{1024*(k%4)}')
    a(f'''
    s_add_u32 s{S_OFF+1}, s{S_BASE}, 8192
    s_add_u32 s{S_OFF+2}, s{S_BASE}, 16384
    s_add_u32 s{S_OFF+3}, s{S_BASE}, 24576
    ''')
    for l in w1_loads(0, range(8), S_BASE): a(l)
    for l in w1_loads(1, range(8), S_OFF + 1): a(l)
    for l in w1_loads(2, range(8), S_OFF + 2): a(l)
    for l in w1_loads(3, range(4), S_OFF + 3): a(l)
    a(f'''
    s_mov_b32 s{S_OUT}, s22
    s_mov_b32 s{S_OUT+1}, s23
    s_mov_b32 s{S_OUT+2}, 32768
    s_mov_b32 s{S_OUT+3}, 0x20000
    ''')
    for i in range(96):
        a(f'v_accvgpr_write_b32 a{i}, 0')
    for d in (1, 2, 3):
        a(f'''
        s_xor_b32 s{S_T}, s{S_W}, {d}
        s_mul_i32 s{S_T}, s{S_T}, 24576
        s_add_u32 s{S_T}, s{S_T}, {RED + (d-1)*8192}
        v_add_u32 v{V_RW+d-1}, s{S_T}, v{V_L16}
        ''')
    a(f'''
    s_mul_i32 s{S_T}, s{S_W}, 24576
    s_add_u32 s{S_T}, s{S_T}, {RED}
    v_add_u32 v{V_RR}, s{S_T}, v{V_L16}
    v_lshlrev_b32 v{V_SM}, 6, v9
    v_add_u32 v{V_SM}, {SMALL}, v{V_SM}
    s_lshl_b32 s{S_T}, s{S_W0}, 9
    s_lshl_b32 s{S_T2}, s{S_W1B}, 3
    s_add_u32 s{S_T}, s{S_T}, s{S_T2}
    v_lshlrev_b32 v{V_FW}, 4, v11
    v_lshl_add_u32 v{V_FW}, v9, 2, v{V_FW}
    v_add_u32 v{V_FW}, s{S_T}, v{V_FW}
    s_lshr_b32 s{S_IDXO}, s{S_BASE}, 11
    v_add_u32 v{GA}, s{S_IDXO}, v{V_IDXB0}
    v_add_u32 v{GA+1}, s{S_IDXO}, v{V_IDXB1}
    s_lshl_b32 s{S_T}, s{S_W}, 2
    s_add_u32 s{S_T}, s{S_T}, 384
    v_add_u32 v{GA+2}, s{S_T}, v{V_IDXB0}
    v_add_u32 v{GA+3}, s{S_T}, v{V_IDXB1}
    ''')
    stamp(a)
    for k in range(16):
        a(f's_waitcnt vmcnt({43-k})')
        if k == 15:
            a(f'''
            s_cmp_eq_u32 s{S_W}, 3
            s_cbranch_scc1 L_notw
            ''')
        a(f'ds_write_b128 v{V_TWR}, {rng("a",TST+4*k,4)} offset:{256*k}')
    a(f'''
    L_notw:
    s_waitcnt lgkmcnt(0)
    ''')
    stamp(a)
    a(f'''
    s_barrier
    ds_read_b128 {rng("v",IDX,4)}, v{GA}
    ds_read_b128 {rng("v",IDX+4,4)}, v{GA+1}
    ds_read_b32 v{V_T0}, v{GA+2}
    ds_read_b32 v{V_T0+1}, v{GA+3}
    ''')
    for e in range(8):
        a(f'ds_read_b128 {rng("v",POOL+4*e,4)}, v{V_SM} offset:{16*(e&3)+128*(e>>2)}')
    a(f'''
    s_waitcnt lgkmcnt(8)
    ds_write_b32 v{GA}, v{V_T0}
    ds_write_b32 v{GA+1}, v{V_T0+1}
    ''')
    a('s_nop 0')
    for l in gather_list(0, 0): a(l)
    a('s_waitcnt lgkmcnt(6)')
    for xp in range(2):
        for rho in range(16):
            src = POOL + 4 * (rho & 7) + 2 * (rho >> 3) + xp
            a(f'v_perm_b32 v{OWN+16*xp+rho}, v{src}, v{src}, s{S_SELX}')
    a(f'''
    s_cmp_eq_u32 s{S_W}, 0
    s_cbranch_scc0 L_nowide
    v_mul_u32_u24 v{V_T0}, 26, v0
    v_add_u32 v{V_T0}, {XW}, v{V_T0}
    ''')
    for j in range(13):
        a(f'ds_read_u16 v{V_T0+2+j}, v{V_T0} offset:{2*j}')
    for j in range(13):
        if j % 2 == 0: a(f's_lshl_b32 s{S_WWF+j}, s{S_WW+j//2}, 16')
        else: a(f's_and_b32 s{S_WWF+j}, s{S_WW+j//2}, 0xffff0000')
    a(f'''
    v_mov_b32 v{V_WIDE}, 0
    s_waitcnt lgkmcnt(0)
    ''')
    for j in range(13):
        a(f'v_lshlrev_b32 v{V_T0+2+j}, 16, v{V_T0+2+j}')
    for j in range(13):
        a(f'v_fmac_f32 v{V_WIDE}, s{S_WWF+j}, v{V_T0+2+j}')
    a('L_nowide:')
    a('s_waitcnt vmcnt(20)')
    for l in prep_list(0, 0, 0): a(l)
    a('s_nop 1')
    stamp(a)
    pro_end = len(a.lines)
    a.label('L_loop')
    loop_start = len(a.lines)
    for j in range(4):
        streams = [(prep_list(j, 1, 1), 0.0, 0.9),
                   (w1_loads((j - 1) % 4, range(4, 8), S_OFF + (j - 1) % 4), 0.0, 1.0),
                   (gather_list((j + 1) % 4, (j + 1) % 2), 0.0, 0.6)]
        if j == 2:
            streams.append(([f'v_add_u32 v{GA+2}, s{S_IDXO}, v{V_IDXB0}',
                             f'v_add_u32 v{GA+3}, s{S_IDXO}, v{V_IDXB1}',
                             f'ds_read_b128 {rng("v",IDX,4)}, v{GA+2}',
                             f'ds_read_b128 {rng("v",IDX+4,4)}, v{GA+3}'], 0.62, 0.95))
        interleave(a, mfma_list(0, 0, j % 2), streams, pre=['s_waitcnt lgkmcnt(0)'])
        pre = []
        streams = [(['s_waitcnt vmcnt(16)'] + prep_list((j + 1) % 4, 0, 0), 0.0, 0.9),
                   (w1_loads(j, range(0, 4), S_OFF + j), 0.12 if j == 0 else 0.05, 1.0)]
        if j == 0:
            pre = [f's_add_u32 s{S_BASE}, s{S_BASE}, 0x20000',
                   f's_sub_u32 s{S_T}, s{S_BASE}, 0xc0000',
                   f's_cmp_ge_u32 s{S_BASE}, 0xc0000',
                   f's_cselect_b32 s{S_BASE}, s{S_T}, s{S_BASE}',
                   f's_cmp_eq_u32 s{S_IT}, 5',
                   f's_cselect_b32 s{S_OFF}, s{S_EXTRA}, s{S_BASE}',
                   f's_cselect_b32 s{S_T}, 0x7ff00000, s{S_BASE}']
            streams.append(([f's_add_u32 s{S_OFF+1}, s{S_T}, 8192',
                             f's_add_u32 s{S_OFF+2}, s{S_T}, 16384',
                             f's_add_u32 s{S_OFF+3}, s{S_T}, 24576',
                             f's_lshr_b32 s{S_IDXO}, s{S_BASE}, 11',
                             f's_add_u32 s{S_IT}, s{S_IT}, 1'], 0.3, 0.9))
        if j == 3:
            streams.append(([f's_cmp_lt_u32 s{S_IT}, 6'], 0.95, 1.0))
        interleave(a, mfma_list(1, 1, j % 2), streams, pre=pre)
    a('s_cbranch_scc1 L_loop')
    loop_end = len(a.lines)
    stamp(a)
    interleave(a, mfma_list(0, 0, 0), [(prep_list(0, 1, 1), 0.0, 0.9)], pre=['s_waitcnt lgkmcnt(0)'])
    def red_writes(m, q):
        k, b = accreg(m, q)
        d = m + 2 * (q & 1)
        return [f'ds_write_b128 v{V_RW+d-1}, {rng(k,b+4*i,4)} offset:{(q>>1)*4096+i*1024}' for i in range(4)]
    mf = mfma_list(1, 1, 0)
    a('s_barrier')
    a(mf[0]); a('s_nop 3'); a(mf[1]); a('s_nop 3')
    wr = red_writes(1, 0) + red_writes(0, 1) + red_writes(1, 1)
    for k in range(6):
        a(mf[2 + k])
        a(wr[2 * k]); a(wr[2 * k + 1])
    for e in range(8):
        a(f'ds_read_b128 {rng("v",RAW+4*e,4)}, v{V_SM} offset:{256+16*(e&3)+128*(e>>2)}')
    a('s_nop 1')
    for l in red_writes(1, 2) + red_writes(0, 3) + red_writes(1, 3): a(l)
    a('s_waitcnt lgkmcnt(12)')
    W2R = POOL
    for xp in range(2):
        for rho in range(16):
            src = RAW + 4 * (rho & 7) + 2 * (rho >> 3) + xp
            a(f'v_perm_b32 v{W2R+16*xp+rho}, v{src}, v{src}, s{S_SELX}')
    a('''
    s_waitcnt vmcnt(0) lgkmcnt(0)
    s_barrier
    ''')
    stamp(a)
    for d in range(3):
        for i in range(8):
            a(f'ds_read_b128 {rng("v",RAW+32*d+4*i,4)}, v{V_RR} offset:{d*8192+i*1024}')
    for d in range(3):
        for half in range(2):
            rem = 24 - (d * 8 + half * 4 + 4)
            a(f's_waitcnt lgkmcnt({min(rem,15)})')
            for r in range(16):
                rr = half * 16 + r
                a(f'v_add_f32 v{OWN+rr}, v{OWN+rr}, v{RAW+32*d+rr}')
    for r in range(32):
        a(f'v_max_f32 v{OWN+r}, 0, v{OWN+r}')
    for r in range(32):
        c = V_T0 + (r & 3)
        if r < 4: a(f'v_mul_f32 v{c}, v{OWN+r}, v{W2R+r}')
        else: a(f'v_fmac_f32 v{c}, v{OWN+r}, v{W2R+r}')
    a(f'''
    v_add_f32 v{V_T0}, v{V_T0}, v{V_T0+1}
    v_add_f32 v{V_T0+2}, v{V_T0+2}, v{V_T0+3}
    v_add_f32 v{V_T0}, v{V_T0}, v{V_T0+2}
    ds_write_b32 v{V_FW}, v{V_T0} offset:{FIN}
    s_waitcnt lgkmcnt(0)
    s_barrier
    s_cmp_eq_u32 s{S_W}, 0
    s_cbranch_scc0 L_fin
    ds_read_b128 {rng("v",V_T0+4,4)}, v{V_L16} offset:{FIN}
    s_lshl_b32 s{S_BW}, s{S_BW}, 16
    s_lshl_b32 s{S_B2}, s{S_B2}, 16
    v_cvt_pk_bf16_f32 v{V_WIDE}, v{V_WIDE}, v{V_WIDE}
    v_lshlrev_b32 v{V_WIDE}, 16, v{V_WIDE}
    v_add_f32 v{V_WIDE}, s{S_BW}, v{V_WIDE}
    v_cvt_pk_bf16_f32 v{V_WIDE}, v{V_WIDE}, v{V_WIDE}
    v_lshlrev_b32 v{V_WIDE}, 16, v{V_WIDE}
    s_lshl_b32 s{S_T}, s2, 7
    v_lshlrev_b32 v{V_T0+1}, 1, v0
    s_waitcnt lgkmcnt(0)
    v_add_f32 v{V_T0+4}, v{V_T0+4}, v{V_T0+5}
    v_add_f32 v{V_T0+6}, v{V_T0+6}, v{V_T0+7}
    v_add_f32 v{V_T0}, v{V_T0+4}, v{V_T0+6}
    v_cvt_pk_bf16_f32 v{V_T0}, v{V_T0}, v{V_T0}
    v_lshlrev_b32 v{V_T0}, 16, v{V_T0}
    v_add_f32 v{V_T0}, s{S_B2}, v{V_T0}
    v_cvt_pk_bf16_f32 v{V_T0}, v{V_T0}, v{V_T0}
    v_lshlrev_b32 v{V_T0}, 16, v{V_T0}
    v_add_f32 v{V_T0}, v{V_WIDE}, v{V_T0}
    v_cvt_pk_bf16_f32 v{V_T0}, v{V_T0}, v{V_T0}
    v_lshlrev_b32 v{V_T0}, 16, v{V_T0}
    v_mul_f32 v{V_T0}, 0xbfb8aa3b, v{V_T0}
    v_exp_f32 v{V_T0}, v{V_T0}
    s_nop 0
    v_add_f32 v{V_T0}, 1.0, v{V_T0}
    v_rcp_f32 v{V_T0}, v{V_T0}
    s_nop 0
    v_cvt_pk_bf16_f32 v{V_T0}, v{V_T0}, v{V_T0}
    buffer_store_short v{V_T0}, v{V_T0+1}, {rng("s",S_OUT,4)}, s{S_T} offen
    L_fin:
    ''')
    if DEBUG:
        a('s_waitcnt vmcnt(0)')
        stamp(a)
        n = NSTAMP[0]
        a(f'''
        s_mov_b32 s{S_OUT}, s98
        s_mov_b32 s{S_OUT+1}, s99
        s_mov_b32 s{S_OUT+2}, 0x1000000
        s_lshl_b32 s{S_T}, s2, 2
        s_add_u32 s{S_T}, s{S_T}, s{S_W}
        s_mul_i32 s{S_T}, s{S_T}, {16*n}
        v_lshlrev_b32 v{V_T0+1}, 2, v0
        s_mov_b64 exec, {hex((1<<(4*n))-1)}
        buffer_store_dword v19, v{V_T0+1}, {rng("s",S_OUT,4)}, s{S_T} offen
        ''')
    a('''
    L_end:
    s_endpgm
    ''')
    L = a.lines
    errs = hazard.check(L, 'linear')
    errs += hazard.check(L[loop_start:loop_end] + L[loop_start:loop_end], 'backedge')
    return L, errs

HEADER = open('cdna_kernels/' + NAME + '.s.ref').read().split('; Override launch')[0]

def main():
    global DEBUG
    if '--debug' in sys.argv:
        DEBUG = True; sys.argv.remove('--debug')
    L, errs = build()
    for e in errs: print(e, file=sys.stderr)
    out = HEADER
    out += f'; @launch grid=(256,1,1) block=(256,1,1) lds={LDS_BYTES}\n'
    out += f'''.amdgcn_target "amdgcn-amd-amdhsa--gfx950"
.text
.globl {NAME}_kernel
.p2align 8
.type {NAME}_kernel,@function
{NAME}_kernel:
'''
    out += '\n'.join(L) + '\n'
    out += f'''.section .rodata,"a"
.p2align 6
.amdhsa_kernel {NAME}_kernel
  .amdhsa_next_free_vgpr 512
  .amdhsa_next_free_sgpr 102
  .amdhsa_accum_offset 256
  .amdhsa_group_segment_fixed_size 0
  .amdhsa_kernarg_size 96
  .amdhsa_user_sgpr_count 2
  .amdhsa_user_sgpr_kernarg_segment_ptr 1
  .amdhsa_system_sgpr_workgroup_id_x 1
.end_amdhsa_kernel
'''
    path = sys.argv[1] if len(sys.argv) > 1 else 'cdna_kernels/' + NAME + '.s'
    open(path, 'w').write(out)
    print('wrote', path, len(L), 'lines;', len(errs), 'hazards', 'stamps', NSTAMP[0])

if __name__ == '__main__':
    main()
```

```python
import sys
import hazard

NAME = 'standalone__deep_cross_wide_deep__recsys'

PL = 16160
RED = 4 * PL
XW = RED + 25600
SMALL = RED + 98304
B1L = SMALL
W2L = SMALL + 256
FIN = 0
LDS_BYTES = 163840

RAW = 128
POOL = 96
OWN = 64
IDX = 56
GA = 52
V_W1OFF = 1
V_GCONST = 2
V_IDXB0 = 3
V_IDXB1 = 4
V_L16 = 7
V_TWR = 10
V_WIDE = 12
V_RW = 13
V_RR = 16
V_SM = 17
V_FW = 18
V_T0 = 20
EBUF = 96
TST = 128

S_W1 = 24; S_IDX = 28; S_TAB = 32; S_XW = 36; S_B1 = 40; S_W2 = 44; S_OUT = 48
S_W = 52; S_SELE = 53; S_SELO = 54; S_IT = 55; S_BASE = 56; S_OFF = 57
S_EXTRA = 61; S_SELX = 62; S_T = 63; S_T2 = 74; S_T3 = 75; S_W0 = 76; S_W1B = 77; S_IDXO = 78
S_WW = 64
S_BW = 72; S_B2 = 73
S_WWF = 80

def accreg(m, q):
    if m == 0 and q == 0: return ('v', OWN)
    if m == 0 and q == 2: return ('v', OWN + 16)
    table = {(1, 0): 0, (0, 1): 16, (1, 1): 32, (1, 2): 48, (0, 3): 64, (1, 3): 80}
    return ('a', table[(m, q)])

def rng(kind, base, n):
    return f'{kind}[{base}:{base + n - 1}]'

class Asm:
    def __init__(self):
        self.lines = []
    def __call__(self, s):
        for l in s.strip('\n').split('\n'):
            self.lines.append('    ' + l.strip() if not l.strip().endswith(':') else l.strip())
    def label(self, s):
        self.lines.append(s + ':')

def raw(j, r, p):
    return RAW + 32 * j + 4 * r + p

def prep_list(j, x, pool):
    out = []
    pb = POOL + 16 * pool
    for t in range(4):
        out.append(f'v_permlane16_swap_b32 v{raw(j,2*t,x)}, v{raw(j,2*t,x+2)}')
        out.append(f'v_permlane16_swap_b32 v{raw(j,2*t+1,x)}, v{raw(j,2*t+1,x+2)}')
        out.append(f'v_perm_b32 v{pb+t}, v{raw(j,2*t+1,x)}, v{raw(j,2*t,x)}, s{S_SELE}')
        out.append(f'v_perm_b32 v{pb+4+t}, v{raw(j,2*t+1,x)}, v{raw(j,2*t,x)}, s{S_SELO}')
    for t in range(4):
        out.append(f'v_perm_b32 v{pb+8+t}, v{raw(j,2*t+1,x+2)}, v{raw(j,2*t,x+2)}, s{S_SELE}')
    for t in range(4):
        out.append(f'v_perm_b32 v{pb+12+t}, v{raw(j,2*t+1,x+2)}, v{raw(j,2*t,x+2)}, s{S_SELO}')
    return out

def mfma_list(x, pool, eb):
    out = []
    pb = POOL + 16 * pool
    for fi, (sg, par) in enumerate([(0, 0), (0, 1), (1, 0), (1, 1)]):
        q = 2 * x + par
        for m in range(2):
            k, b = accreg(m, q)
            e = EBUF + 16 * eb + 8 * m + 4 * sg
            out.append(f'v_mfma_f32_32x32x16_bf16 {rng(k,b,16)}, {rng("v",pb+4*fi,4)}, {rng("a",e,4)}, {rng(k,b,16)}')
    return out

def w1_loads(j, rs, soff):
    return [f'buffer_load_dwordx4 {rng("v",raw(j,r,0),4)}, v{V_W1OFF}, {rng("s",S_W1,4)}, s{soff} offen offset:{256*r}' for r in rs]

def gather_list(jf, eb):
    out = []
    for m in range(2):
        out.append(f'v_lshl_add_u32 v{GA+m}, v{IDX+4*m+jf}, 4, v{V_GCONST}')
    for sg in range(2):
        for m in range(2):
            e = EBUF + 16 * eb + 8 * m + 4 * sg
            out.append(f'ds_read_b128 {rng("a",e,4)}, v{GA+m} offset:{2*PL*sg}')
    return out

def merge(streams):
    items = []
    for si, (lst, t0, t1) in enumerate(streams):
        n = len(lst)
        for i, it in enumerate(lst):
            items.append((t0 + (t1 - t0) * (i + 0.5) / n, si, i, it))
    items.sort(key=lambda z: (z[0], z[1], z[2]))
    return items

def interleave(a, mfmas, streams, pre=()):
    for p in pre: a(p)
    items = merge(streams)
    n = len(mfmas)
    ii = 0
    for k, mf in enumerate(mfmas):
        a(mf)
        tend = (k + 1) / n
        while ii < len(items) and items[ii][0] < tend:
            a(items[ii][3]); ii += 1
    while ii < len(items):
        a(items[ii][3]); ii += 1

DEBUG = False
NSTAMP = [0]
def stamp(a):
    if not DEBUG: return
    k = NSTAMP[0]; NSTAMP[0] += 1
    if DEBUG == 2:
        a(f'''
        s_memrealtime s[94:95]
        s_memtime s[96:97]
        s_waitcnt lgkmcnt(0)
        v_writelane_b32 v19, s94, {2*k}
        v_writelane_b32 v19, s96, {2*k+1}
        ''')
        return
    a(f'''
    s_memrealtime s[94:95]
    s_memtime s[96:97]
    s_waitcnt lgkmcnt(0)
    v_writelane_b32 v19, s94, {4*k}
    v_writelane_b32 v19, s95, {4*k+1}
    v_writelane_b32 v19, s96, {4*k+2}
    v_writelane_b32 v19, s97, {4*k+3}
    ''')

def build():
    a = Asm()
    a(f'''
    s_cmp_ge_u32 s2, 256
    s_cbranch_scc1 L_end
    ''')
    stamp(a)
    if DEBUG: a(f's_load_dwordx2 s[98:99], s[0:1], {88 if DEBUG==1 else 80}')
    a(f'''
    s_load_dwordx16 s[4:19], s[0:1], 0
    s_load_dwordx4 s[20:23], s[0:1], 64
    v_lshrrev_b32 v1, 6, v0
    v_and_b32 v0, 63, v0
    v_readfirstlane_b32 s{S_W}, v1
    v_lshlrev_b32 v{V_L16}, 4, v0
    v_and_b32 v1, 15, v0
    v_lshlrev_b32 v1, 4, v1
    v_bfe_u32 v8, v0, 4, 1
    v_lshl_add_u32 v1, v8, 12, v1
    v_lshrrev_b32 v9, 5, v0
    v_lshl_add_u32 v{V_W1OFF}, v9, 11, v1
    v_mul_u32_u24 v{V_GCONST}, {PL}, v9
    v_and_b32 v10, 3, v0
    v_mul_u32_u24 v10, {PL}, v10
    v_lshrrev_b32 v11, 2, v0
    v_lshl_add_u32 v10, v11, 4, v10
    s_lshl_b32 s{S_T}, s{S_W}, 12
    v_add_u32 v{V_TWR}, s{S_T}, v10
    s_and_b32 s{S_W0}, s{S_W}, 1
    s_lshr_b32 s{S_W1B}, s{S_W}, 1
    v_and_b32 v11, 31, v0
    v_mul_u32_u24 v5, 400, v11
    s_mul_i32 s{S_T}, s{S_W0}, 12800
    s_add_u32 s{S_T2}, s{S_T}, {RED}
    v_add_u32 v{V_IDXB0}, s{S_T2}, v5
    s_sub_u32 s{S_T2}, {RED + 12800}, s{S_T}
    v_add_u32 v{V_IDXB1}, s{S_T2}, v5
    s_mul_i32 s{S_T}, s{S_W1B}, 0x02020202
    s_add_u32 s{S_SELE}, s{S_T}, 0x05040100
    s_sub_u32 s{S_SELO}, 0x07060302, s{S_T}
    s_mul_i32 s{S_T}, s{S_W1B}, 0x02020000
    s_add_u32 s{S_SELX}, s{S_T}, 0x01000c0c
    s_lshr_b32 s{S_T}, s2, 3
    s_mul_i32 s{S_T2}, s{S_T}, 43
    s_lshr_b32 s{S_T2}, s{S_T2}, 8
    s_mul_i32 s{S_T2}, s{S_T2}, 6
    s_sub_u32 s{S_T}, s{S_T}, s{S_T2}
    s_lshl_b32 s{S_T}, s{S_T}, 17
    s_lshl_b32 s{S_T2}, s{S_W}, 15
    s_add_u32 s{S_BASE}, s{S_T}, s{S_T2}
    s_add_u32 s{S_EXTRA}, s{S_W}, 96
    s_lshl_b32 s{S_EXTRA}, s{S_EXTRA}, 13
    s_mov_b32 s{S_IT}, 0
    s_mul_i32 s{S_T3}, s2, 25600
    s_mul_i32 s{S_T}, s{S_W}, 6144
    s_mov_b32 s{S_IDX+2}, 25600
    s_mov_b32 s{S_IDX+3}, 0x20000
    s_mov_b32 s{S_TAB+2}, 64000
    s_mov_b32 s{S_TAB+3}, 0x20000
    s_mov_b32 s{S_W1+2}, 819200
    s_mov_b32 s{S_W1+3}, 0x20000
    s_add_u32 m0, s{S_T}, {RED}
    s_waitcnt lgkmcnt(0)
    s_add_u32 s{S_IDX}, s4, s{S_T3}
    s_addc_u32 s{S_IDX+1}, s5, 0
    s_mov_b32 s{S_TAB}, s6
    s_mov_b32 s{S_TAB+1}, s7
    ''')
    stamp(a)
    ix = f'v{V_L16}, {rng("s",S_IDX,4)}, s{S_T} offen'
    a(f'''
    buffer_load_dwordx4 {ix} lds
    buffer_load_dwordx4 {ix} offset:1024 lds
    buffer_load_dwordx4 {ix} offset:2048 lds
    buffer_load_dwordx4 {ix} offset:3072 lds
    s_add_u32 s{S_T}, s{S_T}, 4096
    s_add_u32 m0, s{S_T}, {RED}
    s_mov_b32 s{S_W1}, s14
    buffer_load_dwordx4 {ix} lds
    buffer_load_dwordx4 {ix} offset:1024 lds
    s_cmp_eq_u32 s{S_W}, 3
    s_cbranch_scc0 L_noidx7
    buffer_load_dwordx4 {ix} offset:2048 lds
    L_noidx7:
    s_mov_b32 s{S_W1+1}, s15
    s_cmp_eq_u32 s{S_W}, 0
    s_cbranch_scc0 L_noxw
    s_mul_i32 s{S_T3}, s2, 1664
    s_add_u32 s{S_XW}, s8, s{S_T3}
    s_addc_u32 s{S_XW+1}, s9, 0
    s_mov_b32 s{S_XW+2}, 1664
    s_mov_b32 s{S_XW+3}, 0x20000
    s_mov_b32 m0, {XW}
    s_load_dwordx8 s[{S_WW}:{S_WW+7}], s[10:11], 0
    s_load_dword s{S_BW}, s[12:13], 0
    s_load_dword s{S_B2}, s[20:21], 0
    buffer_load_dwordx4 v{V_L16}, {rng("s",S_XW,4)}, 0 offen lds
    buffer_load_dwordx4 v{V_L16}, {rng("s",S_XW,4)}, 0 offen offset:1024 lds
    L_noxw:
    s_cmp_eq_u32 s{S_W}, 1
    s_cbranch_scc0 L_nosm
    s_mov_b32 s{S_B1}, s16
    s_mov_b32 s{S_B1+1}, s17
    s_mov_b32 s{S_B1+2}, 256
    s_mov_b32 s{S_B1+3}, 0x20000
    s_mov_b32 s{S_W2}, s18
    s_mov_b32 s{S_W2+1}, s19
    s_mov_b32 s{S_W2+2}, 256
    s_mov_b32 s{S_W2+3}, 0x20000
    s_mov_b32 m0, {B1L}
    s_mov_b64 exec, 0xffff
    buffer_load_dwordx4 v{V_L16}, {rng("s",S_B1,4)}, 0 offen lds
    s_mov_b32 m0, {W2L}
    s_nop 0
    buffer_load_dwordx4 v{V_L16}, {rng("s",S_W2,4)}, 0 offen lds
    s_mov_b64 exec, -1
    L_nosm:
    s_lshl_b32 s{S_T}, s{S_W}, 14
    ''')
    for k in range(16):
        if k and k % 4 == 0:
            a(f's_add_u32 s{S_T}, s{S_T}, 4096')
        a(f'buffer_load_dwordx4 {rng("a",TST+4*k,4)}, v{V_L16}, {rng("s",S_TAB,4)}, s{S_T} offen offset:{1024*(k%4)}')
    a(f'''
    s_add_u32 s{S_OFF+1}, s{S_BASE}, 8192
    s_add_u32 s{S_OFF+2}, s{S_BASE}, 16384
    s_add_u32 s{S_OFF+3}, s{S_BASE}, 24576
    ''')
    for l in w1_loads(0, range(8), S_BASE): a(l)
    for l in w1_loads(1, range(8), S_OFF + 1): a(l)
    for l in w1_loads(2, range(8), S_OFF + 2): a(l)
    for l in w1_loads(3, range(4), S_OFF + 3): a(l)
    a(f'''
    s_mov_b32 s{S_OUT}, s22
    s_mov_b32 s{S_OUT+1}, s23
    s_mov_b32 s{S_OUT+2}, 32768
    s_mov_b32 s{S_OUT+3}, 0x20000
    ''')
    for i in range(96):
        a(f'v_accvgpr_write_b32 a{i}, 0')
    for d in (1, 2, 3):
        a(f'''
        s_xor_b32 s{S_T}, s{S_W}, {d}
        s_mul_i32 s{S_T}, s{S_T}, 24576
        s_add_u32 s{S_T}, s{S_T}, {RED + (d-1)*8192}
        v_add_u32 v{V_RW+d-1}, s{S_T}, v{V_L16}
        ''')
    a(f'''
    s_mul_i32 s{S_T}, s{S_W}, 24576
    s_add_u32 s{S_T}, s{S_T}, {RED}
    v_add_u32 v{V_RR}, s{S_T}, v{V_L16}
    v_lshlrev_b32 v{V_SM}, 6, v9
    v_add_u32 v{V_SM}, {SMALL}, v{V_SM}
    s_lshl_b32 s{S_T}, s{S_W0}, 9
    s_lshl_b32 s{S_T2}, s{S_W1B}, 3
    s_add_u32 s{S_T}, s{S_T}, s{S_T2}
    v_lshlrev_b32 v{V_FW}, 4, v11
    v_lshl_add_u32 v{V_FW}, v9, 2, v{V_FW}
    v_add_u32 v{V_FW}, s{S_T}, v{V_FW}
    s_lshr_b32 s{S_IDXO}, s{S_BASE}, 11
    v_add_u32 v{GA}, s{S_IDXO}, v{V_IDXB0}
    v_add_u32 v{GA+1}, s{S_IDXO}, v{V_IDXB1}
    s_lshl_b32 s{S_T}, s{S_W}, 2
    s_add_u32 s{S_T}, s{S_T}, 384
    v_add_u32 v{GA+2}, s{S_T}, v{V_IDXB0}
    v_add_u32 v{GA+3}, s{S_T}, v{V_IDXB1}
    ''')
    stamp(a)
    for k in range(16):
        a(f's_waitcnt vmcnt({43-k})')
        if k == 15:
            a(f'''
            s_cmp_eq_u32 s{S_W}, 3
            s_cbranch_scc1 L_notw
            ''')
        a(f'ds_write_b128 v{V_TWR}, {rng("a",TST+4*k,4)} offset:{256*k}')
    a(f'''
    L_notw:
    s_waitcnt lgkmcnt(0)
    ''')
    stamp(a)
    a(f'''
    s_barrier
    ds_read_b128 {rng("v",IDX,4)}, v{GA}
    ds_read_b128 {rng("v",IDX+4,4)}, v{GA+1}
    ds_read_b32 v{V_T0}, v{GA+2}
    ds_read_b32 v{V_T0+1}, v{GA+3}
    ''')
    for e in range(8):
        a(f'ds_read_b128 {rng("v",POOL+4*e,4)}, v{V_SM} offset:{16*(e&3)+128*(e>>2)}')
    a(f'''
    s_waitcnt lgkmcnt(8)
    ds_write_b32 v{GA}, v{V_T0}
    ds_write_b32 v{GA+1}, v{V_T0+1}
    ''')
    a('s_nop 0')
    for l in gather_list(0, 0): a(l)
    a('s_waitcnt lgkmcnt(6)')
    for xp in range(2):
        for rho in range(16):
            src = POOL + 4 * (rho & 7) + 2 * (rho >> 3) + xp
            a(f'v_perm_b32 v{OWN+16*xp+rho}, v{src}, v{src}, s{S_SELX}')
    a(f'''
    s_cmp_eq_u32 s{S_W}, 0
    s_cbranch_scc0 L_nowide
    v_mul_u32_u24 v{V_T0}, 26, v0
    v_add_u32 v{V_T0}, {XW}, v{V_T0}
    ''')
    for j in range(13):
        a(f'ds_read_u16 v{V_T0+2+j}, v{V_T0} offset:{2*j}')
    for j in range(13):
        if j % 2 == 0: a(f's_lshl_b32 s{S_WWF+j}, s{S_WW+j//2}, 16')
        else: a(f's_and_b32 s{S_WWF+j}, s{S_WW+j//2}, 0xffff0000')
    a(f'''
    v_mov_b32 v{V_WIDE}, 0
    s_waitcnt lgkmcnt(0)
    ''')
    for j in range(13):
        a(f'v_lshlrev_b32 v{V_T0+2+j}, 16, v{V_T0+2+j}')
    for j in range(13):
        a(f'v_fmac_f32 v{V_WIDE}, s{S_WWF+j}, v{V_T0+2+j}')
    a('L_nowide:')
    a('s_waitcnt vmcnt(20)')
    for l in prep_list(0, 0, 0): a(l)
    a('s_nop 1')
    stamp(a)
    pro_end = len(a.lines)
    a.label('L_loop')
    loop_start = len(a.lines)
    for j in range(4):
        streams = [(prep_list(j, 1, 1), 0.0, 0.9),
                   (w1_loads((j - 1) % 4, range(4, 8), S_OFF + (j - 1) % 4), 0.0, 1.0),
                   (gather_list((j + 1) % 4, (j + 1) % 2), 0.0, 0.6)]
        if j == 2:
            streams.append(([f'v_add_u32 v{GA+2}, s{S_IDXO}, v{V_IDXB0}',
                             f'v_add_u32 v{GA+3}, s{S_IDXO}, v{V_IDXB1}',
                             f'ds_read_b128 {rng("v",IDX,4)}, v{GA+2}',
                             f'ds_read_b128 {rng("v",IDX+4,4)}, v{GA+3}'], 0.62, 0.95))
        interleave(a, mfma_list(0, 0, j % 2), streams, pre=['s_waitcnt lgkmcnt(0)'])
        pre = []
        streams = [(['s_waitcnt vmcnt(16)'] + prep_list((j + 1) % 4, 0, 0), 0.0, 0.9),
                   (w1_loads(j, range(0, 4), S_OFF + j), 0.12 if j == 0 else 0.05, 1.0)]
        if j == 0:
            pre = [f's_add_u32 s{S_BASE}, s{S_BASE}, 0x20000',
                   f's_sub_u32 s{S_T}, s{S_BASE}, 0xc0000',
                   f's_cmp_ge_u32 s{S_BASE}, 0xc0000',
                   f's_cselect_b32 s{S_BASE}, s{S_T}, s{S_BASE}',
                   f's_cmp_eq_u32 s{S_IT}, 5',
                   f's_cselect_b32 s{S_OFF}, s{S_EXTRA}, s{S_BASE}',
                   f's_cselect_b32 s{S_T}, 0x7ff00000, s{S_BASE}']
            streams.append(([f's_add_u32 s{S_OFF+1}, s{S_T}, 8192',
                             f's_add_u32 s{S_OFF+2}, s{S_T}, 16384',
                             f's_add_u32 s{S_OFF+3}, s{S_T}, 24576',
                             f's_lshr_b32 s{S_IDXO}, s{S_BASE}, 11',
                             f's_add_u32 s{S_IT}, s{S_IT}, 1'], 0.3, 0.9))
        if j == 3:
            streams.append(([f's_cmp_lt_u32 s{S_IT}, 6'], 0.95, 1.0))
        interleave(a, mfma_list(1, 1, j % 2), streams, pre=pre)
    a('s_cbranch_scc1 L_loop')
    loop_end = len(a.lines)
    stamp(a)
    interleave(a, mfma_list(0, 0, 0), [(prep_list(0, 1, 1), 0.0, 0.9)], pre=['s_waitcnt lgkmcnt(0)'])
    def red_writes(m, q):
        k, b = accreg(m, q)
        d = m + 2 * (q & 1)
        return [f'ds_write_b128 v{V_RW+d-1}, {rng(k,b+4*i,4)} offset:{(q>>1)*4096+i*1024}' for i in range(4)]
    mf = mfma_list(1, 1, 0)
    a('s_barrier')
    a(mf[0]); a('s_nop 3'); a(mf[1]); a('s_nop 3')
    wr = red_writes(1, 0) + red_writes(0, 1) + red_writes(1, 1)
    for k in range(6):
        a(mf[2 + k])
        a(wr[2 * k]); a(wr[2 * k + 1])
    for e in range(8):
        a(f'ds_read_b128 {rng("v",RAW+4*e,4)}, v{V_SM} offset:{256+16*(e&3)+128*(e>>2)}')
    a('s_nop 1')
    for l in red_writes(1, 2) + red_writes(0, 3) + red_writes(1, 3): a(l)
    a('s_waitcnt lgkmcnt(12)')
    W2R = POOL
    for xp in range(2):
        for rho in range(16):
            src = RAW + 4 * (rho & 7) + 2 * (rho >> 3) + xp
            a(f'v_perm_b32 v{W2R+16*xp+rho}, v{src}, v{src}, s{S_SELX}')
    a('''
    s_waitcnt vmcnt(0) lgkmcnt(0)
    s_barrier
    ''')
    stamp(a)
    for d in range(3):
        for i in range(8):
            a(f'ds_read_b128 {rng("v",RAW+32*d+4*i,4)}, v{V_RR} offset:{d*8192+i*1024}')
    for d in range(3):
        for half in range(2):
            rem = 24 - (d * 8 + half * 4 + 4)
            a(f's_waitcnt lgkmcnt({min(rem,15)})')
            for r in range(16):
                rr = half * 16 + r
                a(f'v_add_f32 v{OWN+rr}, v{OWN+rr}, v{RAW+32*d+rr}')
    for r in range(32):
        a(f'v_max_f32 v{OWN+r}, 0, v{OWN+r}')
    for r in range(32):
        c = V_T0 + (r & 3)
        if r < 4: a(f'v_mul_f32 v{c}, v{OWN+r}, v{W2R+r}')
        else: a(f'v_fmac_f32 v{c}, v{OWN+r}, v{W2R+r}')
    a(f'''
    v_add_f32 v{V_T0}, v{V_T0}, v{V_T0+1}
    v_add_f32 v{V_T0+2}, v{V_T0+2}, v{V_T0+3}
    v_add_f32 v{V_T0}, v{V_T0}, v{V_T0+2}
    ds_write_b32 v{V_FW}, v{V_T0} offset:{FIN}
    s_waitcnt lgkmcnt(0)
    s_barrier
    s_cmp_eq_u32 s{S_W}, 0
    s_cbranch_scc0 L_fin
    ds_read_b128 {rng("v",V_T0+4,4)}, v{V_L16} offset:{FIN}
    s_lshl_b32 s{S_BW}, s{S_BW}, 16
    s_lshl_b32 s{S_B2}, s{S_B2}, 16
    v_cvt_pk_bf16_f32 v{V_WIDE}, v{V_WIDE}, v{V_WIDE}
    v_lshlrev_b32 v{V_WIDE}, 16, v{V_WIDE}
    v_add_f32 v{V_WIDE}, s{S_BW}, v{V_WIDE}
    v_cvt_pk_bf16_f32 v{V_WIDE}, v{V_WIDE}, v{V_WIDE}
    v_lshlrev_b32 v{V_WIDE}, 16, v{V_WIDE}
    s_lshl_b32 s{S_T}, s2, 7
    v_lshlrev_b32 v{V_T0+1}, 1, v0
    s_waitcnt lgkmcnt(0)
    v_add_f32 v{V_T0+4}, v{V_T0+4}, v{V_T0+5}
    v_add_f32 v{V_T0+6}, v{V_T0+6}, v{V_T0+7}
    v_add_f32 v{V_T0}, v{V_T0+4}, v{V_T0+6}
    v_cvt_pk_bf16_f32 v{V_T0}, v{V_T0}, v{V_T0}
    v_lshlrev_b32 v{V_T0}, 16, v{V_T0}
    v_add_f32 v{V_T0}, s{S_B2}, v{V_T0}
    v_cvt_pk_bf16_f32 v{V_T0}, v{V_T0}, v{V_T0}
    v_lshlrev_b32 v{V_T0}, 16, v{V_T0}
    v_add_f32 v{V_T0}, v{V_WIDE}, v{V_T0}
    v_cvt_pk_bf16_f32 v{V_T0}, v{V_T0}, v{V_T0}
    v_lshlrev_b32 v{V_T0}, 16, v{V_T0}
    v_mul_f32 v{V_T0}, 0xbfb8aa3b, v{V_T0}
    v_exp_f32 v{V_T0}, v{V_T0}
    s_nop 0
    v_add_f32 v{V_T0}, 1.0, v{V_T0}
    v_rcp_f32 v{V_T0}, v{V_T0}
    s_nop 0
    v_cvt_pk_bf16_f32 v{V_T0}, v{V_T0}, v{V_T0}
    buffer_store_short v{V_T0}, v{V_T0+1}, {rng("s",S_OUT,4)}, s{S_T} offen
    L_fin:
    ''')
    if DEBUG:
        a('s_waitcnt vmcnt(0)')
        stamp(a)
        n = NSTAMP[0]
        if DEBUG == 2:
            a(f'''
            s_lshl_b32 s{S_T}, s2, 2
            s_add_u32 s{S_T}, s{S_T}, s{S_W}
            s_cmp_eq_u32 s{S_T}, 400
            s_cbranch_scc0 L_end
            s_mov_b32 s{S_OUT}, s98
            s_mov_b32 s{S_OUT+1}, s99
            s_mov_b32 s{S_OUT+2}, 64
            v_lshlrev_b32 v{V_T0+1}, 2, v0
            buffer_store_dword v19, v{V_T0+1}, {rng("s",S_OUT,4)}, 0 offen
            ''')
        else:
          a(f'''
        s_mov_b32 s{S_OUT}, s98
        s_mov_b32 s{S_OUT+1}, s99
        s_mov_b32 s{S_OUT+2}, 0x1000000
        s_lshl_b32 s{S_T}, s2, 2
        s_add_u32 s{S_T}, s{S_T}, s{S_W}
        s_mul_i32 s{S_T}, s{S_T}, {16*n}
        v_lshlrev_b32 v{V_T0+1}, 2, v0
        s_mov_b32 exec_lo, {hex(((1<<(4*n))-1)&0xffffffff)}
        s_mov_b32 exec_hi, {hex(((1<<(4*n))-1)>>32)}
        buffer_store_dword v19, v{V_T0+1}, {rng("s",S_OUT,4)}, s{S_T} offen
        ''')
    a('''
    L_end:
    s_endpgm
    ''')
    L = a.lines
    errs = hazard.check(L, 'linear')
    errs += hazard.check(L[loop_start:loop_end] + L[loop_start:loop_end], 'backedge')
    return L, errs

HEADER = open('cdna_kernels/' + NAME + '.s.ref').read().split('; Override launch')[0]

def main():
    global DEBUG
    if '--debug' in sys.argv:
        DEBUG = 1; sys.argv.remove('--debug')
    if '--dbg2' in sys.argv:
        DEBUG = 2; sys.argv.remove('--dbg2')
    L, errs = build()
    for e in errs: print(e, file=sys.stderr)
    out = HEADER
    out += f'; @launch grid=(256,1,1) block=(256,1,1) lds={LDS_BYTES}\n'
    out += f'''.amdgcn_target "amdgcn-amd-amdhsa--gfx950"
.text
.globl {NAME}_kernel
.p2align 8
.type {NAME}_kernel,@function
{NAME}_kernel:
'''
    out += '\n'.join(L) + '\n'
    out += f'''.section .rodata,"a"
.p2align 6
.amdhsa_kernel {NAME}_kernel
  .amdhsa_next_free_vgpr 512
  .amdhsa_next_free_sgpr 102
  .amdhsa_accum_offset 256
  .amdhsa_group_segment_fixed_size 0
  .amdhsa_kernarg_size 96
  .amdhsa_user_sgpr_count 2
  .amdhsa_user_sgpr_kernarg_segment_ptr 1
  .amdhsa_system_sgpr_workgroup_id_x 1
.end_amdhsa_kernel
'''
    path = sys.argv[1] if len(sys.argv) > 1 else 'cdna_kernels/' + NAME + '.s'
    open(path, 'w').write(out)
    print('wrote', path, len(L), 'lines;', len(errs), 'hazards', 'stamps', NSTAMP[0])

if __name__ == '__main__':
    main()
```

```python
import sys
import hazard

NAME = 'standalone__deep_cross_wide_deep__recsys'

PL = 16160
RED = 4 * PL
SM = RED + 28672
LDS_BYTES = RED + 98304

RAW = 128
POOL = 112
OWN = 80
IDX = 64
W2R = 48
GA = 44
IB = 40
V_W1OFF = 1
V_GCONST = 2
V_L16 = 7
V_TWR = 10
V_WIDE = 12
V_RW = 13
V_RR = 16
V_SM = 17
V_T0 = 20
EBUF = 96
TST = 128

S_W1 = 24; S_IDX = 28; S_TAB = 32; S_XW = 36; S_B1 = 40; S_W2 = 44; S_OUT = 48
S_W = 52; S_SELL = 53; S_SELH = 54; S_IT = 55; S_BASE = 56; S_OFF = 57
S_EXTRA = 61; S_T = 63; S_T2 = 74; S_T3 = 75; S_IDXO = 78
S_WW = 64
S_BW = 72; S_B2 = 73
S_XO = 80; S_SMB = 81; S_IO = 82; S_TO = 83
V_XA = 3; V_XS = 4

def accreg(m, c):
    if m == 0: return ('v', OWN + 4 * c)
    return ('a', (m - 1) * 32 + 4 * c)

def rng(kind, base, n):
    return f'{kind}[{base}:{base + n - 1}]'

class Asm:
    def __init__(self):
        self.lines = []
    def __call__(self, s):
        for l in s.strip('\n').split('\n'):
            l = l.strip()
            if not l: continue
            self.lines.append(l if l.endswith(':') else '    ' + l)
    def label(self, s):
        self.lines.append(s + ':')

def raw(j, r, p):
    return RAW + 32 * j + 4 * r + p

def perms(j, c):
    pb = POOL + 4 * (c % 4)
    sel = S_SELH if c & 1 else S_SELL
    return [f'v_perm_b32 v{pb+t}, v{raw(j,2*t+1,c>>1)}, v{raw(j,2*t,c>>1)}, s{sel}' for t in range(4)]

def mfmas(c, eb):
    pb = POOL + 4 * (c % 4)
    out = []
    for m in (1, 2, 3, 0):
        k, b = accreg(m, c)
        e = EBUF + 16 * eb + 4 * m
        out.append(f'v_mfma_f32_16x16x32_bf16 {rng(k,b,4)}, {rng("v",pb,4)}, {rng("a",e,4)}, {rng(k,b,4)}')
    return out

def w1_load(j, r, soff):
    return f'buffer_load_dwordx4 {rng("v",raw(j,r,0),4)}, v{V_W1OFF}, {rng("s",S_W1,4)}, s{soff} offen offset:{256*r}'

def gather(jf, eb, m):
    e = EBUF + 16 * eb + 4 * m
    return [f'v_lshl_add_u32 v{GA+m}, v{IDX+4*m+jf}, 4, v{V_GCONST}',
            f'ds_read_b128 {rng("a",e,4)}, v{GA+m}']

SKIP = set()
def skipped(t):
    if 'perm' in SKIP and t.startswith('v_perm_b32'): return True
    if 'load' in SKIP and (t.startswith('buffer_load') or 'vmcnt' in t): return True
    if 'gather' in SKIP and t.startswith('ds_read_b128 a'): return True
    if 'mfma' in SKIP and t.startswith('v_mfma'): return True
    return False

def slot(a0, mf, gaps):
    def a(t):
        if not skipped(t): a0(t)
    for k in range(len(mf)):
        a(mf[k])
        for t in gaps[k]: a(t)

DEBUG = 0
NSTAMP = [0]
def stamp(a):
    if not DEBUG: return
    k = NSTAMP[0]; NSTAMP[0] += 1
    if DEBUG == 2:
        a(f'''
        s_memrealtime s[94:95]
        s_memtime s[96:97]
        s_waitcnt lgkmcnt(0)
        v_writelane_b32 v19, s94, {2*k}
        v_writelane_b32 v19, s96, {2*k+1}
        ''')
        return
    a(f'''
    s_memrealtime s[94:95]
    s_memtime s[96:97]
    s_waitcnt lgkmcnt(0)
    v_writelane_b32 v19, s94, {4*k}
    v_writelane_b32 v19, s95, {4*k+1}
    v_writelane_b32 v19, s96, {4*k+2}
    v_writelane_b32 v19, s97, {4*k+3}
    ''')

LD = 0
def build():
    a = Asm()
    a(f"""
    s_cmp_ge_u32 s2, 256
    s_cbranch_scc1 L_end
    """)
    stamp(a)
    if DEBUG: a(f's_load_dwordx2 s[98:99], s[0:1], {88 if DEBUG==1 else 80}')
    a(f"""
    s_load_dwordx16 s[4:19], s[0:1], 0
    s_load_dwordx4 s[20:23], s[0:1], 64
    v_lshrrev_b32 v1, 6, v0
    v_and_b32 v0, 63, v0
    v_readfirstlane_b32 s{S_W}, v1
    v_lshlrev_b32 v{V_L16}, 4, v0
    s_mov_b32 s{S_IDX+2}, 25600
    s_mov_b32 s{S_IDX+3}, 0x20000
    s_mov_b32 s{S_TAB+2}, 64000
    s_mov_b32 s{S_TAB+3}, 0x20000
    s_mov_b32 s{S_XW+2}, 416
    s_mov_b32 s{S_XW+3}, 0x20000
    s_mov_b32 s{S_B1+2}, 256
    s_mov_b32 s{S_B1+3}, 0x20000
    s_mov_b32 s{S_W2+2}, 256
    s_mov_b32 s{S_W2+3}, 0x20000
    s_lshl_b32 s{S_T2}, s2, 2
    s_add_u32 s{S_T2}, s{S_T2}, s{S_W}
    s_mul_i32 s{S_XO}, s{S_T2}, 416
    s_mul_i32 s{S_T3}, s2, 25600
    s_lshl_b32 s{S_SMB}, s{S_W}, 11
    s_add_u32 s{S_SMB}, s{S_SMB}, {SM}
    s_mov_b32 m0, s{S_SMB}
    s_mul_i32 s{S_IO}, s{S_W}, 6144
    s_lshl_b32 s{S_TO}, s{S_W}, 14
    """)
    F1 = []
    def f1(t):
        for l in t.strip('\n').split('\n'):
            if l.strip(): F1.append(l.strip())
    f1(f"""
    v_and_b32 v11, 15, v0
    v_lshrrev_b32 v9, 4, v0
    v_lshlrev_b32 v1, 4, v11
    v_lshl_add_u32 v{V_W1OFF}, v9, 11, v1
    v_mul_u32_u24 v{V_GCONST}, {PL}, v9
    v_and_b32 v10, 3, v0
    v_mul_u32_u24 v10, {PL}, v10
    v_lshrrev_b32 v8, 2, v0
    v_lshl_add_u32 v10, v8, 4, v10
    s_lshl_b32 s{S_T}, s{S_W}, 12
    v_add_u32 v{V_TWR}, s{S_T}, v10
    s_mov_b32 s{S_SELL}, 0x05040100
    s_mov_b32 s{S_SELH}, 0x07060302
    s_lshr_b32 s{S_T}, s2, 3
    s_mul_i32 s{S_T2}, s{S_T}, 43
    s_lshr_b32 s{S_T2}, s{S_T2}, 8
    s_mul_i32 s{S_T2}, s{S_T2}, 6
    s_sub_u32 s{S_T}, s{S_T}, s{S_T2}
    s_lshl_b32 s{S_T}, s{S_T}, 17
    s_lshl_b32 s{S_T2}, s{S_W}, 15
    s_add_u32 s{S_BASE}, s{S_T}, s{S_T2}
    s_add_u32 s{S_EXTRA}, s{S_W}, 96
    s_lshl_b32 s{S_EXTRA}, s{S_EXTRA}, 13
    s_mov_b32 s{S_IT}, 0
    s_mov_b32 s{S_W1+2}, 819200
    s_mov_b32 s{S_W1+3}, 0x20000
    s_mov_b32 s{S_OUT+2}, 32768
    s_mov_b32 s{S_OUT+3}, 0x20000
    s_mov_b32 s{S_OFF}, s{S_BASE}
    s_add_u32 s{S_OFF+1}, s{S_BASE}, 8192
    s_add_u32 s{S_OFF+2}, s{S_BASE}, 16384
    s_add_u32 s{S_OFF+3}, s{S_BASE}, 24576
    v_mul_u32_u24 v5, 400, v11
    """)
    for d in (1, 2, 3):
        f1(f"""
        s_xor_b32 s{S_T}, s{S_W}, {d}
        s_mul_i32 s{S_T2}, s{S_T}, 24576
        s_add_u32 s{S_T2}, s{S_T2}, {RED + (d-1)*8192}
        v_add_u32 v{V_RW+d-1}, s{S_T2}, v{V_L16}
        s_mul_i32 s{S_T2}, s{S_T}, 6400
        s_add_u32 s{S_T2}, s{S_T2}, {RED}
        v_add_u32 v{IB+d}, s{S_T2}, v5
        """)
    f1(f"""
    s_mul_i32 s{S_T}, s{S_W}, 24576
    s_add_u32 s{S_T}, s{S_T}, {RED}
    v_add_u32 v{V_RR}, s{S_T}, v{V_L16}
    s_mul_i32 s{S_T2}, s{S_W}, 6400
    s_add_u32 s{S_T2}, s{S_T2}, {RED}
    v_add_u32 v{IB}, s{S_T2}, v5
    v_lshlrev_b32 v{V_SM}, 6, v9
    v_add_u32 v{V_SM}, s{S_SMB}, v{V_SM}
    v_mul_u32_u24 v{V_XA}, 26, v11
    v_and_b32 v{V_XS}, 2, v{V_XA}
    v_and_b32 v{V_XA}, 0xfffc, v{V_XA}
    v_add_u32 v{V_XA}, s{S_SMB}, v{V_XA}
    v_add_u32 v{V_XA}, 1024, v{V_XA}
    s_lshr_b32 s{S_IDXO}, s{S_BASE}, 11
    s_lshl_b32 s{S_T}, s{S_W}, 2
    s_add_u32 s{S_T}, s{S_T}, 384
    """)
    for m in range(4):
        f1(f'v_add_u32 v{GA+m}, s{S_IDXO}, v{IB+m}')
        f1(f'v_add_u32 v{V_T0+4+m}, s{S_T}, v{IB+m}')
    NPRE = len(F1) + 24
    for i in range(96):
        f1(f'v_accvgpr_write_b32 a{i}, 0')
    def drain(lst, n):
        for _ in range(min(n, len(lst))): a(lst.pop(0))
    drain(F1, NPRE)
    a(f"""
    s_mov_b32 exec_hi, 0
    s_waitcnt lgkmcnt(0)
    s_mov_b32 s{S_B1}, s16
    s_mov_b32 s{S_B1+1}, s17
    """)
    stamp(a)
    ix = f'v{V_L16}, {rng("s",S_IDX,4)}, s{S_IO} offen'
    a(f"""
    buffer_load_dwordx4 v{V_L16}, {rng("s",S_B1,4)}, 0 offen lds
    s_add_u32 m0, s{S_SMB}, 512
    s_mov_b32 s{S_W2}, s18
    s_mov_b32 s{S_W2+1}, s19
    buffer_load_dwordx4 v{V_L16}, {rng("s",S_W2,4)}, 0 offen lds
    s_add_u32 m0, s{S_SMB}, 1024
    s_add_u32 s{S_XW}, s8, s{S_XO}
    s_addc_u32 s{S_XW+1}, s9, 0
    buffer_load_dwordx4 v{V_L16}, {rng("s",S_XW,4)}, 0 offen lds
    s_add_u32 m0, s{S_IO}, {RED}
    s_add_u32 s{S_IDX}, s4, s{S_T3}
    s_addc_u32 s{S_IDX+1}, s5, 0
    s_mov_b32 exec_hi, -1
    buffer_load_dwordx4 {ix} lds
    s_mov_b32 s{S_TAB}, s6
    s_mov_b32 s{S_TAB+1}, s7
    s_mov_b32 s{S_W1}, s14
    s_mov_b32 s{S_W1+1}, s15
    s_mov_b32 s{S_OUT}, s22
    s_mov_b32 s{S_OUT+1}, s23
    buffer_load_dwordx4 {ix} offset:1024 lds
    s_load_dwordx8 s[{S_WW}:{S_WW+7}], s[10:11], 0
    s_load_dword s{S_BW}, s[12:13], 0
    s_load_dword s{S_B2}, s[20:21], 0
    buffer_load_dwordx4 {ix} offset:2048 lds
    """)
    drain(F1, 4)
    a(f"""
    buffer_load_dwordx4 {ix} offset:3072 lds
    s_add_u32 s{S_IO}, s{S_IO}, 4096
    s_add_u32 m0, s{S_IO}, {RED}
    """)
    drain(F1, 4)
    a(f'buffer_load_dwordx4 {ix} lds')
    drain(F1, 4)
    a(f"""
    buffer_load_dwordx4 {ix} offset:1024 lds
    s_cmp_eq_u32 s{S_W}, 3
    s_cbranch_scc0 L_noidx7
    buffer_load_dwordx4 {ix} offset:2048 lds
    L_noidx7:
    """)
    for k in range(16):
        if k and k % 4 == 0:
            a(f's_add_u32 s{S_TO}, s{S_TO}, 4096')
        a(f'buffer_load_dwordx4 {rng("a",TST+4*k,4)}, v{V_L16}, {rng("s",S_TAB,4)}, s{S_TO} offen offset:{1024*(k%4)}')
        drain(F1, 4)
    drain(F1, 1000)
    stamp(a)
    WL = [w1_load(i // 8, i % 8, S_OFF + i // 8) for i in range(26 - LD)]
    XR = IDX
    F2a = [f'ds_read_b128 {rng("v",POOL+4*e,4)}, v{V_SM} offset:{16*e}' for e in range(4)]
    F2a += [f'ds_read_b128 {rng("v",W2R+4*e,4)}, v{V_SM} offset:{512+16*e}' for e in range(4)]
    F2a += [f'ds_read2_b32 {rng("v",XR+2*e,2)}, v{V_XA} offset0:{2*e} offset1:{1+2*e}' for e in range(4)]
    F2b = []
    for c in range(8):
        for rg in range(4):
            src = POOL + 4 * rg + (c >> 1)
            if c & 1: F2b.append(f'v_and_b32 v{OWN+4*c+rg}, 0xffff0000, v{src}')
            else: F2b.append(f'v_lshlrev_b32 v{OWN+4*c+rg}, 16, v{src}')
    F2b.append(f's_and_b32 s{S_WW+6}, s{S_WW+6}, 0xffff')
    for e in range(7):
        F2b.append(f'v_alignbyte_b32 v{XR+e}, v{XR+e+1}, v{XR+e}, v{V_XS}')
    for e in range(7):
        F2b.append(f'v_dot2_f32_bf16 v{V_WIDE}, v{XR+e}, s{S_WW+e}, ' + ('0' if e == 0 else f'v{V_WIDE}'))
    F2b += [l.strip() for l in f"""
    s_lshl_b32 s{S_BW}, s{S_BW}, 16
    s_lshl_b32 s{S_B2}, s{S_B2}, 16
    s_nop 1
    v_cvt_pk_bf16_f32 v{V_WIDE}, v{V_WIDE}, v{V_WIDE}
    v_lshlrev_b32 v{V_WIDE}, 16, v{V_WIDE}
    v_add_f32 v{V_WIDE}, s{S_BW}, v{V_WIDE}
    v_cvt_pk_bf16_f32 v{V_WIDE}, v{V_WIDE}, v{V_WIDE}
    v_lshlrev_b32 v{V_WIDE}, 16, v{V_WIDE}
    """.strip().split('\n')]
    for k in range(16):
        a(f's_waitcnt vmcnt(15)')
        if k == 15:
            a(f"""
            s_cmp_eq_u32 s{S_W}, 3
            s_cbranch_scc1 L_notw
            """)
        a(f'ds_write_b128 v{V_TWR}, {rng("a",TST+4*k,4)} offset:{256*k}')
        if k == 15: a('L_notw:')
        a(WL.pop(0))
        if k < 2: drain(F2a, 6)
        if k == 3: a('s_waitcnt lgkmcnt(0)')
        if k >= 3: drain(F2b, 6)
    drain(F2b, 1000)
    drain(WL, 1)
    a('s_waitcnt lgkmcnt(0)')
    stamp(a)
    a('s_barrier')
    stamp(a)
    for m in (1, 2, 3, 0):
        a(f'ds_read_b128 {rng("v",IDX+4*m,4)}, v{GA+m}')
    for m in range(4):
        a(f'ds_read_b32 v{V_T0+m}, v{V_T0+4+m}')
    drain(WL, 1)
    for m in range(4):
        a(f'v_mov_b32 v{V_T0+4+m}, v{GA+m}')
    for i, m in enumerate((1, 2, 3, 0)):
        a(f's_waitcnt lgkmcnt({7-i+i})')
        for l in gather(0, 0, m): a(l)
    a('s_waitcnt vmcnt(10)')
    pm = perms(0, 0) + perms(0, 1)
    for i in range(4):
        drain(WL, 1); a(pm[2*i]); a(pm[2*i+1])
    a('s_waitcnt lgkmcnt(4)')
    for m in range(4):
        a(f'ds_write_b32 v{V_T0+4+m}, v{V_T0+m}')
    drain(WL, 1000)
    a('s_waitcnt lgkmcnt(4)')
    stamp(a)
    a.label('L_loop')
    loop_start = len(a.lines)
    for j in range(4):
        for c in range(8):
            if c < 6: pm = perms(j, c + 2)
            else: pm = perms((j + 1) % 4, c - 6)
            q = (8 * j + c - 6 - LD) % 32
            ld = w1_load(q // 8, q % 8, S_OFF + q // 8)
            gaps = [[pm[0]], [ld, pm[1]], [pm[2]], [pm[3]]]
            if c == 6: gaps[0] = [f's_waitcnt vmcnt({16-LD})', pm[0]]
            if c == 7: gaps[3].append('s_waitcnt lgkmcnt(0)')
            if c < 4:
                g = gather((j + 1) % 4, (j + 1) % 2, (c + 1) % 4)
                gaps[0].append(g[0]); gaps[2].insert(0, g[1])
            if j == 2 and c >= 4:
                m = c - 4
                if c != 6:
                    gaps[0].append(f'v_add_u32 v{GA+m}, s{S_IDXO}, v{IB+m}')
                if c == 5:
                    gaps[3].append(f'v_add_u32 v{GA+2}, s{S_IDXO}, v{IB+2}')
                gaps[2].insert(0, f'ds_read_b128 {rng("v",IDX+4*m,4)}, v{GA+m}')
            if j == 0 and c == 3:
                gaps[3].append(f's_add_u32 s{S_BASE}, s{S_BASE}, 0x20000')
            if j == 0 and c == 4:
                gaps[0].append(f's_sub_u32 s{S_T}, s{S_BASE}, 0xc0000')
                gaps[2].append(f's_cmp_ge_u32 s{S_BASE}, 0xc0000')
                gaps[3].append(f's_cselect_b32 s{S_BASE}, s{S_T}, s{S_BASE}')
            if j == 0 and c == 5:
                gaps[0].append(f's_cmp_eq_u32 s{S_IT}, 5')
                gaps[2].append(f's_cselect_b32 s{S_OFF}, s{S_EXTRA}, s{S_BASE}')
                gaps[3].append(f's_cselect_b32 s{S_T}, 0x7ff00000, s{S_BASE}')
            if j == 0 and c == 6:
                gaps[2].append(f's_add_u32 s{S_OFF+1}, s{S_T}, 8192')
                gaps[3].append(f's_add_u32 s{S_OFF+2}, s{S_T}, 16384')
            if j == 0 and c == 7:
                gaps[2].append(f's_lshr_b32 s{S_IDXO}, s{S_BASE}, 11')
            if j == 1 and c == 4:
                gaps[0].append(f's_add_u32 s{S_IT}, s{S_IT}, 1')
            if j == 1 and c == 5:
                gaps[0].append(f's_add_u32 s{S_OFF+3}, s{S_T}, 24576')
            if j == 3 and c == 7:
                gaps[0].append(f's_cmp_lt_u32 s{S_IT}, 6')
                gaps[2].append(gaps[3].pop(0))
            slot(a, mfmas(c, j % 2), gaps)
    a('s_cbranch_scc1 L_loop')
    loop_end = len(a.lines)
    stamp(a)
    def red_writes(c):
        out = []
        for m in (1, 2, 3):
            k, b = accreg(m, c)
            out.append(f'ds_write_b128 v{V_RW+m-1}, {rng(k,b,4)} offset:{c*1024}')
        return out
    for c in range(8):
        pm = perms(0, c + 2) if c < 6 else [None] * 4
        gaps = [[p] if p else [] for p in pm]
        if c == 1: gaps[3].append('s_barrier')
        if c >= 2:
            w = red_writes(c - 2)
            for k in range(3): gaps[k].insert(0, w[k])
        slot(a, mfmas(c, 0), gaps)
    for l in red_writes(6): a(l)
    a('s_nop 3')
    for l in red_writes(7): a(l)
    a('''
    s_waitcnt vmcnt(0) lgkmcnt(0)
    s_barrier
    ''')
    stamp(a)
    for d in range(3):
        for c in range(8):
            a(f'ds_read_b128 {rng("v",RAW+32*d+4*c,4)}, v{V_RR} offset:{d*8192+c*1024}')
    for d in range(3):
        for half in range(2):
            rem = 24 - (d * 8 + half * 4 + 4)
            a(f's_waitcnt lgkmcnt({min(rem,15)})')
            for r in range(0, 16, 2):
                rr = half * 16 + r
                a(f'v_pk_add_f32 {rng("v",OWN+rr,2)}, {rng("v",OWN+rr,2)}, {rng("v",RAW+32*d+rr,2)}')
    HP = RAW
    for e in range(4):
        for rg in range(4):
            a(f'v_cvt_pk_bf16_f32 v{HP+4*rg+e}, v{OWN+4*(2*e)+rg}, v{OWN+4*(2*e+1)+rg}')
    for i in range(16):
        a(f'v_pk_max_i16 v{HP+i}, v{HP+i}, 0')
    for i in range(16):
        cacc = V_T0 + (i & 3)
        if i < 4: a(f'v_dot2_f32_bf16 v{cacc}, v{HP+i}, v{W2R+i}, 0')
        else: a(f'v_dot2_f32_bf16 v{cacc}, v{HP+i}, v{W2R+i}, v{cacc}')
    a(f'''
    s_nop 2
    v_add_f32 v{V_T0}, v{V_T0}, v{V_T0+1}
    v_add_f32 v{V_T0+2}, v{V_T0+2}, v{V_T0+3}
    v_add_f32 v{V_T0}, v{V_T0}, v{V_T0+2}
    v_mov_b32 v{V_T0+1}, v{V_T0}
    s_lshl_b32 s{S_T}, s2, 7
    s_lshl_b32 s{S_T2}, s{S_W}, 5
    v_permlane32_swap_b32 v{V_T0}, v{V_T0+1}
    v_add_f32 v{V_T0}, v{V_T0}, v{V_T0+1}
    v_mov_b32 v{V_T0+1}, v{V_T0}
    s_add_u32 s{S_T}, s{S_T}, s{S_T2}
    v_lshlrev_b32 v{V_T0+2}, 1, v11
    v_permlane16_swap_b32 v{V_T0}, v{V_T0+1}
    v_add_f32 v{V_T0}, v{V_T0}, v{V_T0+1}
    v_cvt_pk_bf16_f32 v{V_T0}, v{V_T0}, v{V_T0}
    v_lshlrev_b32 v{V_T0}, 16, v{V_T0}
    v_add_f32 v{V_T0}, s{S_B2}, v{V_T0}
    v_cvt_pk_bf16_f32 v{V_T0}, v{V_T0}, v{V_T0}
    v_lshlrev_b32 v{V_T0}, 16, v{V_T0}
    v_add_f32 v{V_T0}, v{V_WIDE}, v{V_T0}
    v_cvt_pk_bf16_f32 v{V_T0}, v{V_T0}, v{V_T0}
    v_lshlrev_b32 v{V_T0}, 16, v{V_T0}
    v_mul_f32 v{V_T0}, 0xbfb8aa3b, v{V_T0}
    v_exp_f32 v{V_T0}, v{V_T0}
    s_mov_b32 exec_lo, 0xffff
    v_add_f32 v{V_T0}, 1.0, v{V_T0}
    v_rcp_f32 v{V_T0}, v{V_T0}
    s_mov_b32 exec_hi, 0
    v_cvt_pk_bf16_f32 v{V_T0}, v{V_T0}, v{V_T0}
    buffer_store_short v{V_T0}, v{V_T0+2}, {rng("s",S_OUT,4)}, s{S_T} offen
    ''')
    if DEBUG:
        a('s_mov_b64 exec, -1')
        a('s_waitcnt vmcnt(0)')
        stamp(a)
        n = NSTAMP[0]
        if DEBUG == 2:
            a(f'''
            s_lshl_b32 s{S_T}, s2, 2
            s_add_u32 s{S_T}, s{S_T}, s{S_W}
            s_cmp_eq_u32 s{S_T}, 400
            s_cbranch_scc0 L_end
            s_mov_b32 s{S_OUT}, s98
            s_mov_b32 s{S_OUT+1}, s99
            s_mov_b32 s{S_OUT+2}, 64
            v_lshlrev_b32 v{V_T0+1}, 2, v0
            buffer_store_dword v19, v{V_T0+1}, {rng("s",S_OUT,4)}, 0 offen
            ''')
        else:
            a(f'''
            s_mov_b32 s{S_OUT}, s98
            s_mov_b32 s{S_OUT+1}, s99
            s_mov_b32 s{S_OUT+2}, 0x1000000
            s_lshl_b32 s{S_T}, s2, 2
            s_add_u32 s{S_T}, s{S_T}, s{S_W}
            s_mul_i32 s{S_T}, s{S_T}, {16*n}
            v_lshlrev_b32 v{V_T0+1}, 2, v0
            s_mov_b32 exec_lo, {hex(((1<<(4*n))-1)&0xffffffff)}
            s_mov_b32 exec_hi, {hex(((1<<(4*n))-1)>>32)}
            buffer_store_dword v19, v{V_T0+1}, {rng("s",S_OUT,4)}, s{S_T} offen
            ''')
    a('''
    L_end:
    s_endpgm
    ''')
    L = a.lines
    errs = hazard.check(L, 'linear')
    errs += hazard.check(L[loop_start:loop_end] + L[loop_start:loop_end], 'backedge')
    return L, errs

HEADER = open('cdna_kernels/' + NAME + '.s.ref').read().split('; Override launch')[0]

def main():
    global DEBUG
    if '--debug' in sys.argv:
        DEBUG = 1; sys.argv.remove('--debug')
    if '--dbg2' in sys.argv:
        DEBUG = 2; sys.argv.remove('--dbg2')
    for arg in list(sys.argv):
        if arg.startswith('--ld='):
            global LD
            LD = int(arg[5:]); sys.argv.remove(arg)
        if arg.startswith('--skip='):
            SKIP.update(arg[7:].split(',')); sys.argv.remove(arg)
    L, errs = build()
    for e in errs: print(e, file=sys.stderr)
    out = HEADER
    out += f'; @launch grid=(256,1,1) block=(256,1,1) lds={LDS_BYTES}\n'
    out += f'''.amdgcn_target "amdgcn-amd-amdhsa--gfx950"
.text
.globl {NAME}_kernel
.p2align 8
.type {NAME}_kernel,@function
{NAME}_kernel:
'''
    out += '\n'.join(L) + '\n'
    out += f'''.section .rodata,"a"
.p2align 6
.amdhsa_kernel {NAME}_kernel
  .amdhsa_next_free_vgpr 512
  .amdhsa_next_free_sgpr 102
  .amdhsa_accum_offset 256
  .amdhsa_group_segment_fixed_size 0
  .amdhsa_kernarg_size 96
  .amdhsa_user_sgpr_count 2
  .amdhsa_user_sgpr_kernarg_segment_ptr 1
  .amdhsa_system_sgpr_workgroup_id_x 1
.end_amdhsa_kernel
'''
    path = sys.argv[1] if len(sys.argv) > 1 else 'cdna_kernels/' + NAME + '.s'
    open(path, 'w').write(out)
    print('wrote', path, len(L), 'lines;', len(errs), 'hazards', 'stamps', NSTAMP[0])

if __name__ == '__main__':
    main()
```

```python
import sys
import hazard

NAME = 'standalone__deep_cross_wide_deep__recsys'

PL = 16416
RED = 3 * PL + 16000
IDXL = RED + 49152
SM = IDXL + 25600
LDS_BYTES = RED + 98304

RAW = 128; POOL = 112; OWN = 80; IDX = 64; W2R = 48; GA = 44; IB = 40
V_W1OFF = 1; V_GCONST = 2; V_XA = 3; V_XS = 4; V_L16 = 7; V_G = 9; V_TWR = 10; V_J = 11; V_WIDE = 12
V_RW = 13
V_RR = 16; V_SM = 17; V_OA = 18
V_T0 = 20
V_TW4 = 28
V_RW2 = 30
V_RR2 = 33
EBUF = 96; TST = 128
S_W1 = 24; S_IDX = 28; S_TAB = 32; S_XW = 36; S_B1 = 40; S_W2 = 44; S_OUT = 48
S_W = 52; S_SELL = 53; S_SELH = 54; S_IT = 55; S_BASE = 56; S_OFF = 57
S_EXTRA = 61; S_OO = 62; S_T = 63; S_WW = 64
S_BW = 72; S_B2 = 73; S_T2 = 74; S_T3 = 75; S_IDXO = 78
S_XO = 80; S_SMB = 81; S_IO = 82; S_TO = 83; S_G0 = 84; S_G = 85

LD = 4
DEBUG = 0
NSTAMP = [0]
SKIP = set()

def rng(kind, base, n): return f'{kind}[{base}:{base + n - 1}]'
def lines(t): return [l.strip() for l in t.strip('\n').split('\n') if l.strip()]

class Asm:
    def __init__(self): self.lines = []
    def __call__(self, s):
        for l in lines(s):
            self.lines.append(l if l.endswith(':') else '    ' + l)

def accreg(m, c):
    if m == 0: return ('v', OWN + 4 * c)
    return ('a', (m - 1) * 32 + 4 * c)
def raw(j, r, p): return RAW + 32 * j + 4 * r + p
def perms(j, c):
    pb = POOL + 4 * (c % 4)
    sel = S_SELH if c & 1 else S_SELL
    return [f'v_perm_b32 v{pb+t}, v{raw(j,2*t+1,c>>1)}, v{raw(j,2*t,c>>1)}, s{sel}' for t in range(4)]
def mfmas(c, eb):
    pb = POOL + 4 * (c % 4)
    out = []
    for m in (1, 2, 3, 0):
        k, b = accreg(m, c)
        e = EBUF + 16 * eb + 4 * m
        out.append(f'v_mfma_f32_16x16x32_bf16 {rng(k,b,4)}, {rng("v",pb,4)}, {rng("a",e,4)}, {rng(k,b,4)}')
    return out
def w1_load(j, r, soff):
    return f'buffer_load_dwordx4 {rng("v",raw(j,r,0),4)}, v{V_W1OFF}, {rng("s",S_W1,4)}, s{soff} offen offset:{256*r}'
def gather(jf, eb, m):
    e = EBUF + 16 * eb + 4 * m
    return [f'v_lshl_add_u32 v{GA+m}, v{IDX+4*m+jf}, 4, v{V_GCONST}', f'ds_read_b128 {rng("a",e,4)}, v{GA+m}']
def skipped(t):
    if 'perm' in SKIP and t.startswith('v_perm_b32'): return True
    if 'load' in SKIP and (t.startswith('buffer_load') or 'vmcnt' in t): return True
    if 'gather' in SKIP and t.startswith('ds_read_b128 a'): return True
    if 'mfma' in SKIP and t.startswith('v_mfma'): return True
    return False
def slot(a0, mf, gaps):
    def a(t):
        if not skipped(t): a0(t)
    for k in range(len(mf)):
        a(mf[k])
        for t in gaps[k]: a(t)
def stamp(a):
    if not DEBUG: return
    k = NSTAMP[0]; NSTAMP[0] += 1
    a(f'''
    s_memrealtime s[94:95]
    s_memtime s[96:97]
    s_waitcnt lgkmcnt(0)
    v_writelane_b32 v19, s94, {4*k}
    v_writelane_b32 v19, s95, {4*k+1}
    v_writelane_b32 v19, s96, {4*k+2}
    v_writelane_b32 v19, s97, {4*k+3}
    ''')

def build():
    a = Asm()
    def drain(lst, n):
        for _ in range(min(n, len(lst))): a(lst.pop(0))
    a('''
    s_cmp_ge_u32 s2, 256
    s_cbranch_scc1 L_end
    ''')
    stamp(a)
    if DEBUG: a('s_load_dwordx2 s[98:99], s[0:1], 88')
    a(f'''
    s_load_dwordx16 s[4:19], s[0:1], 0
    s_load_dwordx4 s[20:23], s[0:1], 64
    v_lshrrev_b32 v1, 6, v0
    v_and_b32 v0, 63, v0
    v_readfirstlane_b32 s{S_W}, v1
    v_lshlrev_b32 v{V_L16}, 4, v0
    s_mov_b32 s{S_IDX+2}, 25600
    s_mov_b32 s{S_IDX+3}, 0x20000
    s_mov_b32 s{S_TAB+2}, 64000
    s_mov_b32 s{S_TAB+3}, 0x20000
    s_mov_b32 s{S_XW+2}, 416
    s_mov_b32 s{S_XW+3}, 0x20000
    s_mov_b32 s{S_B1+2}, 256
    s_mov_b32 s{S_B1+3}, 0x20000
    s_mov_b32 s{S_W2+2}, 256
    s_mov_b32 s{S_W2+3}, 0x20000
    s_lshl_b32 s{S_T2}, s2, 2
    s_add_u32 s{S_T2}, s{S_T2}, s{S_W}
    s_mul_i32 s{S_XO}, s{S_T2}, 416
    s_lshl_b32 s{S_OO}, s{S_T2}, 5
    s_mul_i32 s{S_T3}, s2, 25600
    s_lshl_b32 s{S_SMB}, s{S_W}, 11
    s_add_u32 s{S_SMB}, s{S_SMB}, {SM}
    s_mov_b32 m0, s{S_SMB}
    v_and_b32 v{V_J}, 15, v0
    v_lshrrev_b32 v{V_G}, 4, v0
    v_lshlrev_b32 v1, 4, v{V_J}
    v_lshl_add_u32 v{V_W1OFF}, v{V_G}, 11, v1
    v_mul_u32_u24 v{V_GCONST}, {PL}, v{V_G}
    v_and_b32 v10, 3, v0
    v_mul_u32_u24 v10, {PL}, v10
    v_lshrrev_b32 v8, 2, v0
    v_lshl_add_u32 v{V_TWR}, v8, 4, v10
    s_mov_b32 s{S_SELL}, 0x05040100
    s_mov_b32 s{S_SELH}, 0x07060302
    s_lshr_b32 s{S_T}, s2, 3
    s_and_b32 s{S_G0}, s{S_T}, 3
    s_mul_i32 s{S_G0}, s{S_G0}, {2*3072}
    s_mul_i32 s{S_TO}, s{S_W}, {21*1024}
    s_mul_i32 s{S_T2}, s{S_T}, 43
    s_lshr_b32 s{S_T2}, s{S_T2}, 8
    s_mul_i32 s{S_T2}, s{S_T2}, 6
    s_sub_u32 s{S_T}, s{S_T}, s{S_T2}
    s_lshl_b32 s{S_T}, s{S_T}, 17
    s_lshl_b32 s{S_T2}, s{S_W}, 15
    s_add_u32 s{S_BASE}, s{S_T}, s{S_T2}
    s_add_u32 s{S_EXTRA}, s{S_W}, 96
    s_lshl_b32 s{S_EXTRA}, s{S_EXTRA}, 13
    s_mov_b32 s{S_IT}, 0
    s_mov_b32 s{S_W1+2}, 819200
    s_mov_b32 s{S_W1+3}, 0x20000
    s_mov_b32 s{S_OUT+2}, 32768
    s_mov_b32 s{S_OUT+3}, 0x20000
    s_mov_b32 s{S_OFF}, s{S_BASE}
    s_add_u32 s{S_OFF+1}, s{S_BASE}, 8192
    s_add_u32 s{S_OFF+2}, s{S_BASE}, 16384
    s_add_u32 s{S_OFF+3}, s{S_BASE}, 24576
    v_mul_u32_u24 v5, 400, v{V_J}
    ''')
    for d in (1, 2, 3):
        a(f'''
        s_xor_b32 s{S_T}, s{S_W}, {d}
        s_mul_i32 s{S_T2}, s{S_T}, 3072
        s_add_u32 s{S_T2}, s{S_T2}, {RED + (d-1)*1024}
        v_add_u32 v{V_RW+d-1}, s{S_T2}, v{V_L16}
        s_mul_i32 s{S_T2}, s{S_T}, 6400
        s_add_u32 s{S_T2}, s{S_T2}, {IDXL}
        v_add_u32 v{IB+d}, s{S_T2}, v5
        v_add_u32 v{V_RW2+d-1}, 49152, v{V_RW+d-1}
        ''')
    a(f'''
    s_mul_i32 s{S_T}, s{S_W}, 3072
    s_add_u32 s{S_T}, s{S_T}, {RED}
    v_add_u32 v{V_RR}, s{S_T}, v{V_L16}
    v_add_u32 v{V_RR2}, 49152, v{V_RR}
    s_mul_i32 s{S_T2}, s{S_W}, 6400
    s_add_u32 s{S_T2}, s{S_T2}, {IDXL}
    v_add_u32 v{IB}, s{S_T2}, v5
    v_lshlrev_b32 v{V_SM}, 6, v{V_G}
    v_add_u32 v{V_SM}, s{S_SMB}, v{V_SM}
    v_mul_u32_u24 v{V_XA}, 26, v{V_J}
    v_and_b32 v{V_XS}, 2, v{V_XA}
    v_and_b32 v{V_XA}, 0xfffc, v{V_XA}
    v_add_u32 v{V_XA}, s{S_SMB}, v{V_XA}
    v_add_u32 v{V_XA}, 1024, v{V_XA}
    v_lshlrev_b32 v{V_OA}, 1, v{V_J}
    s_lshr_b32 s{S_IDXO}, s{S_BASE}, 11
    s_lshl_b32 s{S_T}, s{S_W}, 2
    s_add_u32 s{S_T}, s{S_T}, 384
    ''')
    for m in range(4):
        a(f'v_add_u32 v{GA+m}, s{S_IDXO}, v{IB+m}')
        a(f'v_add_u32 v{V_T0+4+m}, s{S_T}, v{IB+m}')
    F1 = [f'v_accvgpr_write_b32 a{i}, 0' for i in range(96)]
    drain(F1, 8)
    a(f'''
    s_mov_b32 s{S_G}, s{S_G0}
    s_add_u32 s{S_T}, s{S_TO}, s{S_G}
    s_mov_b32 s{S_IO}, 0
    s_mov_b32 exec_hi, 0
    s_waitcnt lgkmcnt(0)
    s_mov_b32 s{S_B1}, s16
    s_mov_b32 s{S_B1+1}, s17
    ''')
    stamp(a)
    a(f'''
    buffer_load_dwordx4 v{V_L16}, {rng("s",S_B1,4)}, 0 offen lds
    s_add_u32 m0, s{S_SMB}, 512
    s_mov_b32 s{S_W2}, s18
    s_mov_b32 s{S_W2+1}, s19
    buffer_load_dwordx4 v{V_L16}, {rng("s",S_W2,4)}, 0 offen lds
    s_add_u32 m0, s{S_SMB}, 1024
    s_add_u32 s{S_XW}, s8, s{S_XO}
    s_addc_u32 s{S_XW+1}, s9, 0
    buffer_load_dwordx4 v{V_L16}, {rng("s",S_XW,4)}, 0 offen lds
    s_mov_b32 exec_hi, -1
    s_mov_b32 s{S_TAB}, s6
    s_mov_b32 s{S_TAB+1}, s7
    s_cmp_eq_u32 s{S_W}, 3
    s_cbranch_scc1 L_idxwave
    ''')
    LATE = lines(f'''
    s_mov_b32 s{S_W1}, s14
    s_mov_b32 s{S_W1+1}, s15
    s_mov_b32 s{S_OUT}, s22
    s_mov_b32 s{S_OUT+1}, s23
    s_load_dwordx8 s[{S_WW}:{S_WW+7}], s[10:11], 0
    s_load_dword s{S_BW}, s[12:13], 0
    s_load_dword s{S_B2}, s[20:21], 0
    ''')
    WLall = [w1_load(i // 8, i % 8, S_OFF + i // 8) for i in range(26 - LD)]
    XR = IDX
    F2a = [f'ds_read_b128 {rng("v",POOL+4*e,4)}, v{V_SM} offset:{16*e}' for e in range(4)]
    F2a += [f'ds_read_b128 {rng("v",W2R+4*e,4)}, v{V_SM} offset:{512+16*e}' for e in range(4)]
    F2a += [f'ds_read2_b32 {rng("v",XR+2*e,2)}, v{V_XA} offset0:{2*e} offset1:{1+2*e}' for e in range(4)]
    F2b = []
    for c in range(8):
        for rg in range(4):
            src = POOL + 4 * rg + (c >> 1)
            if c & 1: F2b.append(f'v_and_b32 v{OWN+4*c+rg}, 0xffff0000, v{src}')
            else: F2b.append(f'v_lshlrev_b32 v{OWN+4*c+rg}, 16, v{src}')
    F2b.append(f's_and_b32 s{S_WW+6}, s{S_WW+6}, 0xffff')
    F2b += [f'v_alignbyte_b32 v{XR+e}, v{XR+e+1}, v{XR+e}, v{V_XS}' for e in range(7)]
    F2b += [f'v_dot2_f32_bf16 v{V_WIDE}, v{XR+e}, s{S_WW+e}, ' + ('0' if e == 0 else f'v{V_WIDE}') for e in range(7)]
    F2b += lines(f'''
    s_lshl_b32 s{S_BW}, s{S_BW}, 16
    s_lshl_b32 s{S_B2}, s{S_B2}, 16
    s_nop 1
    v_cvt_pk_bf16_f32 v{V_WIDE}, v{V_WIDE}, v{V_WIDE}
    v_lshlrev_b32 v{V_WIDE}, 16, v{V_WIDE}
    v_add_f32 v{V_WIDE}, s{S_BW}, v{V_WIDE}
    v_cvt_pk_bf16_f32 v{V_WIDE}, v{V_WIDE}, v{V_WIDE}
    v_lshlrev_b32 v{V_WIDE}, 16, v{V_WIDE}
    ''')
    def adv():
        a(f'''
        s_add_u32 s{S_G}, s{S_G}, 3072
        s_cmp_eq_u32 s{S_G}, {7*3072}
        s_cselect_b32 s{S_G}, 0, s{S_G}
        s_add_u32 s{S_T}, s{S_TO}, s{S_G}
        ''')
    f1 = LATE + F1
    for k in range(21):
        a(f'buffer_load_dwordx4 {rng("a",TST+4*k,4)}, v{V_L16}, {rng("s",S_TAB,4)}, s{S_T} offen offset:{1024*(k%3)}')
        if k % 3 == 2 and k < 20: adv()
        else: drain(f1, 7)
    drain(f1, 1000)
    stamp(a)
    WL = list(WLall); f2a = list(F2a); f2b = list(F2b)
    a(f'''
    s_add_u32 s{S_T}, s{S_TO}, s{S_G0}
    s_mov_b32 s{S_G}, s{S_G0}
    s_lshr_b32 s{S_T}, s{S_T}, 2
    v_add_u32 v{V_TW4}, s{S_T}, v{V_TWR}
    ''')
    nw = 0
    for k in range(21):
        a(f's_waitcnt vmcnt({20 - k + nw})')
        a(f'ds_write_b128 v{V_TW4 + (k//3)%2}, {rng("a",TST+4*k,4)} offset:{256*(k%3)}')
        if nw < 17:
            a(WL.pop(0)); nw += 1
        if k % 3 == 0 and k < 18:
            adv()
            a(f'''
            s_lshr_b32 s{S_T}, s{S_T}, 2
            v_add_u32 v{V_TW4 + (k//3+1)%2}, s{S_T}, v{V_TWR}
            ''')
        elif k in (1, 2): drain(f2a, 6)
        else:
            if k == 4: a('s_waitcnt lgkmcnt(0)')
            drain(f2b, 7)
    drain(f2b, 1000)
    a(f'''
    s_waitcnt lgkmcnt(0)
    s_branch L_join
    L_idxwave:
    s_mov_b32 m0, {IDXL}
    s_add_u32 s{S_IDX}, s4, s{S_T3}
    s_addc_u32 s{S_IDX+1}, s5, 0
    ''')
    f1 = LATE + F1
    ix = f'v{V_L16}, {rng("s",S_IDX,4)}, s{S_IO} offen'
    for k in range(25):
        a(f'buffer_load_dwordx4 {ix} offset:{1024*(k%4)} lds')
        if k % 4 == 3:
            a(f'''
            s_add_u32 s{S_IO}, s{S_IO}, 4096
            s_add_u32 m0, s{S_IO}, {IDXL}
            ''')
        drain(f1, 4)
    drain(f1, 1000)
    if DEBUG: NSTAMP[0] -= 1
    stamp(a)
    WL = list(WLall); f2a = list(F2a); f2b = list(F2b)
    a('s_waitcnt vmcnt(25)')
    drain(f2a, 100)
    drain(WL, 3)
    a('s_waitcnt lgkmcnt(0)')
    for k in range(14):
        drain(WL, 1); drain(f2b, 4)
    drain(f2b, 1000)
    a('''
    s_waitcnt vmcnt(17)
    L_join:
    ''')
    stamp(a)
    a('s_barrier')
    stamp(a)
    for m in (1, 2, 3, 0):
        a(f'ds_read_b128 {rng("v",IDX+4*m,4)}, v{GA+m}')
    for m in range(4):
        a(f'ds_read_b32 v{V_T0+m}, v{V_T0+4+m}')
    drain(WL, 1)
    for m in range(4):
        a(f'v_mov_b32 v{V_T0+4+m}, v{GA+m}')
    for m in (1, 2, 3, 0):
        a('s_waitcnt lgkmcnt(7)')
        for l in gather(0, 0, m): a(l)
    a('s_waitcnt vmcnt(10)')
    pm = perms(0, 0) + perms(0, 1)
    for i in range(4):
        drain(WL, 1); a(pm[2*i]); a(pm[2*i+1])
    a('s_waitcnt lgkmcnt(4)')
    for m in range(4):
        a(f'ds_write_b32 v{V_T0+4+m}, v{V_T0+m}')
    drain(WL, 1000)
    a('s_waitcnt lgkmcnt(4)')
    stamp(a)
    a('L_loop:')
    loop_start = len(a.lines)
    for j in range(4):
        for c in range(8):
            pm = perms(j, c + 2) if c < 6 else perms((j + 1) % 4, c - 6)
            q = (8 * j + c - 6 - LD) % 32
            ld = w1_load(q // 8, q % 8, S_OFF + q // 8)
            gaps = [[pm[0]], [ld, pm[1]], [pm[2]], [pm[3]]]
            if c == 6: gaps[0] = [f's_waitcnt vmcnt({16-LD})', pm[0]]
            if c == 7: gaps[3].append('s_waitcnt lgkmcnt(0)')
            if c < 4:
                g = gather((j + 1) % 4, (j + 1) % 2, (c + 1) % 4)
                gaps[0].append(g[0]); gaps[2].insert(0, g[1])
            if j == 2 and c >= 4:
                m = c - 4
                if c != 6: gaps[0].append(f'v_add_u32 v{GA+m}, s{S_IDXO}, v{IB+m}')
                if c == 5: gaps[3].append(f'v_add_u32 v{GA+2}, s{S_IDXO}, v{IB+2}')
                gaps[2].insert(0, f'ds_read_b128 {rng("v",IDX+4*m,4)}, v{GA+m}')
            if j == 0 and c == 3:
                gaps[3].append(f's_add_u32 s{S_BASE}, s{S_BASE}, 0x20000')
            if j == 0 and c == 4:
                gaps[0].append(f's_sub_u32 s{S_T}, s{S_BASE}, 0xc0000')
                gaps[2].append(f's_cmp_ge_u32 s{S_BASE}, 0xc0000')
                gaps[3].append(f's_cselect_b32 s{S_BASE}, s{S_T}, s{S_BASE}')
            if j == 0 and c == 5:
                gaps[0].append(f's_cmp_eq_u32 s{S_IT}, 5')
                gaps[2].append(f's_cselect_b32 s{S_OFF}, s{S_EXTRA}, s{S_BASE}')
                gaps[3].append(f's_cselect_b32 s{S_T}, 0x7ff00000, s{S_BASE}')
            if j == 0 and c == 6:
                gaps[2].append(f's_add_u32 s{S_OFF+1}, s{S_T}, 8192')
                gaps[3].append(f's_add_u32 s{S_OFF+2}, s{S_T}, 16384')
            if j == 0 and c == 7:
                gaps[2].append(f's_lshr_b32 s{S_IDXO}, s{S_BASE}, 11')
            if j == 1 and c == 4:
                gaps[0].append(f's_add_u32 s{S_IT}, s{S_IT}, 1')
            if j == 1 and c == 5:
                gaps[0].append(f's_add_u32 s{S_OFF+3}, s{S_T}, 24576')
            if j == 3 and c == 7:
                gaps[0].append(f's_cmp_lt_u32 s{S_IT}, 6')
                gaps[2].append(gaps[3].pop(0))
            slot(a, mfmas(c, j % 2), gaps)
    a('s_cbranch_scc1 L_loop')
    loop_end = len(a.lines)
    stamp(a)
    assert 2 <= LD <= 6
    def W(c):
        out = []
        for m in (1, 2, 3):
            k, b = accreg(m, c)
            base = (V_RW if c < 4 else V_RW2) + m - 1
            out.append(f'ds_write_b128 v{base}, {rng(k,b,4)} offset:{(c&3)*12288}')
        return out
    RB = [RAW + 96, RAW, RAW + 96, RAW]
    def R(e):
        out = []
        for d in range(3):
            for i, c in enumerate((2 * e, 2 * e + 1)):
                base = V_RR if c < 4 else V_RR2
                out.append(f'ds_read_b128 {rng("v",RB[e]+8*d+4*i,4)}, v{base} offset:{(c&3)*12288+d*1024}')
        return out
    HP = IDX
    def P(e):
        out = []
        for d in range(3):
            for r in range(0, 8, 2):
                out.append(f'v_pk_add_f32 {rng("v",OWN+8*e+r,2)}, {rng("v",OWN+8*e+r,2)}, {rng("v",RB[e]+8*d+r,2)}')
        for rg in range(4):
            out.append(f'v_cvt_pk_bf16_f32 v{HP+4*rg+e}, v{OWN+8*e+rg}, v{OWN+8*e+4+rg}')
        for rg in range(4):
            out.append(f'v_pk_max_i16 v{HP+4*rg+e}, v{HP+4*rg+e}, 0')
        for rg in range(4):
            out.append(f'v_dot2_f32_bf16 v{V_T0+rg}, v{HP+4*rg+e}, v{W2R+4*rg+e}, ' + ('0' if e == 0 else f'v{V_T0+rg}'))
        return out
    P0 = P(0)
    for c in range(8):
        pm = perms(0, c + 2) if c < 6 else [None] * 4
        gaps = [[p] if p else [] for p in pm]
        if c >= 1:
            w = W(c - 1)
            for k in range(3): gaps[k + 1].insert(0, w[k])
        if c == 4:
            gaps[3] += ['s_waitcnt lgkmcnt(6)', 's_barrier'] + R(0)
        if c == 6:
            gaps[3] += ['s_waitcnt lgkmcnt(12)', 's_barrier'] + R(1) + ['s_waitcnt lgkmcnt(12)']
        if c == 7:
            for k in range(4):
                gaps[k] += P0[6 * k:6 * k + 6]
        slot(a, mfmas(c, 0), gaps)
    for l in W(7): a(l)
    a('s_waitcnt lgkmcnt(12)\ns_barrier')
    for l in R(2): a(l)
    a('s_waitcnt lgkmcnt(12)')
    for l in P(1): a(l)
    a('s_waitcnt lgkmcnt(6)\ns_barrier')
    for l in R(3): a(l)
    a('s_waitcnt lgkmcnt(6)')
    for l in P(2): a(l)
    p3 = P(3)
    for d in range(3):
        a(f's_waitcnt lgkmcnt({4-2*d})')
        for l in p3[4 * d:4 * d + 4]: a(l)
    for l in p3[12:]: a(l)
    stamp(a)
    a(f'''
    s_nop 2
    v_add_f32 v{V_T0}, v{V_T0}, v{V_T0+1}
    v_add_f32 v{V_T0+2}, v{V_T0+2}, v{V_T0+3}
    v_add_f32 v{V_T0}, v{V_T0}, v{V_T0+2}
    v_mov_b32 v{V_T0+1}, v{V_T0}
    s_nop 1
    v_permlane32_swap_b32 v{V_T0}, v{V_T0+1}
    v_add_f32 v{V_T0}, v{V_T0}, v{V_T0+1}
    v_mov_b32 v{V_T0+1}, v{V_T0}
    s_nop 1
    v_permlane16_swap_b32 v{V_T0}, v{V_T0+1}
    v_add_f32 v{V_T0}, v{V_T0}, v{V_T0+1}
    v_cvt_pk_bf16_f32 v{V_T0}, v{V_T0}, v{V_T0}
    v_lshlrev_b32 v{V_T0}, 16, v{V_T0}
    v_add_f32 v{V_T0}, s{S_B2}, v{V_T0}
    v_cvt_pk_bf16_f32 v{V_T0}, v{V_T0}, v{V_T0}
    v_lshlrev_b32 v{V_T0}, 16, v{V_T0}
    v_add_f32 v{V_T0}, v{V_WIDE}, v{V_T0}
    v_cvt_pk_bf16_f32 v{V_T0}, v{V_T0}, v{V_T0}
    v_lshlrev_b32 v{V_T0}, 16, v{V_T0}
    v_mul_f32 v{V_T0}, 0xbfb8aa3b, v{V_T0}
    v_exp_f32 v{V_T0}, v{V_T0}
    s_mov_b32 exec_lo, 0xffff
    v_add_f32 v{V_T0}, 1.0, v{V_T0}
    v_rcp_f32 v{V_T0}, v{V_T0}
    s_mov_b32 exec_hi, 0
    v_cvt_pk_bf16_f32 v{V_T0}, v{V_T0}, v{V_T0}
    buffer_store_short v{V_T0}, v{V_OA}, {rng("s",S_OUT,4)}, s{S_OO} offen
    ''')
    if DEBUG:
        a('s_mov_b64 exec, -1')
        stamp(a)
        n = NSTAMP[0]
        a(f'''
        s_mov_b32 s{S_OUT}, s98
        s_mov_b32 s{S_OUT+1}, s99
        s_mov_b32 s{S_OUT+2}, 0x1000000
        s_lshl_b32 s{S_T}, s2, 2
        s_add_u32 s{S_T}, s{S_T}, s{S_W}
        s_mul_i32 s{S_T}, s{S_T}, {16*n}
        v_lshlrev_b32 v{V_T0+1}, 2, v0
        s_mov_b32 exec_lo, {hex(((1<<(4*n))-1)&0xffffffff)}
        s_mov_b32 exec_hi, {hex(((1<<(4*n))-1)>>32)}
        buffer_store_dword v19, v{V_T0+1}, {rng("s",S_OUT,4)}, s{S_T} offen
        ''')
    a('''
    L_end:
    s_endpgm
    ''')
    L = a.lines
    errs = hazard.check(L, 'linear')
    errs += hazard.check(L[loop_start:loop_end] + L[loop_start:loop_end], 'backedge')
    return L, errs

HEADER = open('cdna_kernels/' + NAME + '.s.ref').read().split('; Override launch')[0]

def main():
    global DEBUG, LD
    for arg in list(sys.argv):
        if arg == '--debug': DEBUG = 1; sys.argv.remove(arg)
        if arg.startswith('--ld='): LD = int(arg[5:]); sys.argv.remove(arg)
        if arg.startswith('--skip='): SKIP.update(arg[7:].split(',')); sys.argv.remove(arg)
    L, errs = build()
    for e in errs: print(e, file=sys.stderr)
    out = HEADER
    out += f'; @launch grid=(256,1,1) block=(256,1,1) lds={LDS_BYTES}\n'
    out += f'''.amdgcn_target "amdgcn-amd-amdhsa--gfx950"
.text
.globl {NAME}_kernel
.p2align 8
.type {NAME}_kernel,@function
{NAME}_kernel:
'''
    out += '\n'.join(L) + '\n'
    out += f'''.section .rodata,"a"
.p2align 6
.amdhsa_kernel {NAME}_kernel
  .amdhsa_next_free_vgpr 512
  .amdhsa_next_free_sgpr 102
  .amdhsa_accum_offset 256
  .amdhsa_group_segment_fixed_size 0
  .amdhsa_kernarg_size 96
  .amdhsa_user_sgpr_count 2
  .amdhsa_user_sgpr_kernarg_segment_ptr 1
  .amdhsa_system_sgpr_workgroup_id_x 1
.end_amdhsa_kernel
'''
    path = sys.argv[1] if len(sys.argv) > 1 else 'cdna_kernels/' + NAME + '.s'
    open(path, 'w').write(out)
    print('wrote', path, len(L), 'lines;', len(errs), 'hazards', 'stamps', NSTAMP[0])

if __name__ == '__main__':
    main()
```

```python
import sys
import hazard

NAME = 'standalone__deep_cross_wide_deep__recsys'

PL = 16416
RED = 3 * PL + 16000
IDXL = RED + 49152
SM = IDXL + 25600
LDS_BYTES = RED + 98304

RAW = 128; POOL = 112; OWN = 80; IDX = 64; W2R = 48; GA = 44; IB = 40
V_W1OFF = 1; V_GCONST = 2; V_XA = 3; V_XS = 4; V_L16 = 7; V_G = 9; V_TWR = 10; V_J = 11; V_WIDE = 12
V_RW = 13
V_RR = 16; V_SM = 17; V_OA = 18
V_T0 = 20
V_TW4 = 28
V_RW2 = 30
V_RR2 = 33
EBUF = 96; TST = 128
S_W1 = 24; S_IDX = 28; S_TAB = 32; S_XW = 36; S_B1 = 40; S_W2 = 44; S_OUT = 48
S_W = 52; S_SELL = 53; S_SELH = 54; S_IT = 55; S_BASE = 56; S_OFF = 57
S_EXTRA = 61; S_OO = 62; S_T = 63; S_WW = 64
S_BW = 72; S_B2 = 73; S_T2 = 74; S_T3 = 75; S_IDXO = 78
S_XO = 80; S_SMB = 81; S_IO = 82; S_TO = 83; S_G0 = 84; S_G = 85

LD = 4
DEBUG = 0
NSTAMP = [0]
SKIP = set()

def rng(kind, base, n): return f'{kind}[{base}:{base + n - 1}]'
def lines(t): return [l.strip() for l in t.strip('\n').split('\n') if l.strip()]

class Asm:
    def __init__(self): self.lines = []
    def __call__(self, s):
        for l in lines(s):
            self.lines.append(l if l.endswith(':') else '    ' + l)

def accreg(m, c):
    if m == 0: return ('v', OWN + 4 * c)
    return ('a', (m - 1) * 32 + 4 * c)
def raw(j, r, p): return RAW + 32 * j + 4 * r + p
def perms(j, c):
    pb = POOL + 4 * (c % 4)
    sel = S_SELH if c & 1 else S_SELL
    return [f'v_perm_b32 v{pb+t}, v{raw(j,2*t+1,c>>1)}, v{raw(j,2*t,c>>1)}, s{sel}' for t in range(4)]
def mfmas(c, eb):
    pb = POOL + 4 * (c % 4)
    out = []
    for m in (1, 2, 3, 0):
        k, b = accreg(m, c)
        e = EBUF + 16 * eb + 4 * m
        out.append(f'v_mfma_f32_16x16x32_bf16 {rng(k,b,4)}, {rng("v",pb,4)}, {rng("a",e,4)}, {rng(k,b,4)}')
    return out
def w1_load(j, r, soff):
    return f'buffer_load_dwordx4 {rng("v",raw(j,r,0),4)}, v{V_W1OFF}, {rng("s",S_W1,4)}, s{soff} offen offset:{256*r}'
def gather(jf, eb, m):
    e = EBUF + 16 * eb + 4 * m
    return [f'v_lshl_add_u32 v{GA+m}, v{IDX+4*m+jf}, 4, v{V_GCONST}', f'ds_read_b128 {rng("a",e,4)}, v{GA+m}']
def skipped(t):
    if 'perm' in SKIP and t.startswith('v_perm_b32'): return True
    if 'load' in SKIP and (t.startswith('buffer_load') or 'vmcnt' in t): return True
    if 'gather' in SKIP and t.startswith('ds_read_b128 a'): return True
    if 'mfma' in SKIP and t.startswith('v_mfma'): return True
    return False
def slot(a0, mf, gaps):
    def a(t):
        if not skipped(t): a0(t)
    for k in range(len(mf)):
        a(mf[k])
        for t in gaps[k]: a(t)
def stamp(a):
    if not DEBUG: return
    k = NSTAMP[0]; NSTAMP[0] += 1
    a(f'''
    s_memrealtime s[94:95]
    s_memtime s[96:97]
    s_waitcnt lgkmcnt(0)
    v_writelane_b32 v19, s94, {4*k}
    v_writelane_b32 v19, s95, {4*k+1}
    v_writelane_b32 v19, s96, {4*k+2}
    v_writelane_b32 v19, s97, {4*k+3}
    ''')

def build():
    a = Asm()
    def drain(lst, n):
        for _ in range(min(n, len(lst))): a(lst.pop(0))
    a('''
    s_cmp_ge_u32 s2, 256
    s_cbranch_scc1 L_end
    ''')
    stamp(a)
    if DEBUG: a('s_load_dwordx2 s[98:99], s[0:1], 88')
    a(f'''
    s_load_dwordx16 s[4:19], s[0:1], 0
    s_load_dwordx4 s[20:23], s[0:1], 64
    v_lshrrev_b32 v1, 6, v0
    v_and_b32 v0, 63, v0
    v_readfirstlane_b32 s{S_W}, v1
    v_lshlrev_b32 v{V_L16}, 4, v0
    s_mov_b32 s{S_IDX+2}, 25600
    s_mov_b32 s{S_IDX+3}, 0x20000
    s_mov_b32 s{S_TAB+2}, 64000
    s_mov_b32 s{S_TAB+3}, 0x20000
    s_mov_b32 s{S_XW+2}, 416
    s_mov_b32 s{S_XW+3}, 0x20000
    s_mov_b32 s{S_B1+2}, 256
    s_mov_b32 s{S_B1+3}, 0x20000
    s_mov_b32 s{S_W2+2}, 256
    s_mov_b32 s{S_W2+3}, 0x20000
    s_lshl_b32 s{S_T2}, s2, 2
    s_add_u32 s{S_T2}, s{S_T2}, s{S_W}
    s_mul_i32 s{S_XO}, s{S_T2}, 416
    s_lshl_b32 s{S_OO}, s{S_T2}, 5
    s_mul_i32 s{S_T3}, s2, 25600
    s_lshl_b32 s{S_SMB}, s{S_W}, 11
    s_add_u32 s{S_SMB}, s{S_SMB}, {SM}
    s_mov_b32 m0, s{S_SMB}
    v_and_b32 v{V_J}, 15, v0
    v_lshrrev_b32 v{V_G}, 4, v0
    v_lshlrev_b32 v1, 4, v{V_J}
    v_lshl_add_u32 v{V_W1OFF}, v{V_G}, 11, v1
    v_mul_u32_u24 v{V_GCONST}, {PL}, v{V_G}
    v_and_b32 v10, 3, v0
    v_mul_u32_u24 v10, {PL}, v10
    v_lshrrev_b32 v8, 2, v0
    v_lshl_add_u32 v{V_TWR}, v8, 4, v10
    s_mov_b32 s{S_SELL}, 0x05040100
    s_mov_b32 s{S_SELH}, 0x07060302
    s_lshr_b32 s{S_T}, s2, 3
    s_and_b32 s{S_G0}, s{S_T}, 3
    s_mul_i32 s{S_G0}, s{S_G0}, {2*3072}
    s_mul_i32 s{S_TO}, s{S_W}, {21*1024}
    s_mul_i32 s{S_T2}, s{S_T}, 43
    s_lshr_b32 s{S_T2}, s{S_T2}, 8
    s_mul_i32 s{S_T2}, s{S_T2}, 6
    s_sub_u32 s{S_T}, s{S_T}, s{S_T2}
    s_lshl_b32 s{S_T}, s{S_T}, 17
    s_lshl_b32 s{S_T2}, s{S_W}, 15
    s_add_u32 s{S_BASE}, s{S_T}, s{S_T2}
    s_add_u32 s{S_EXTRA}, s{S_W}, 96
    s_lshl_b32 s{S_EXTRA}, s{S_EXTRA}, 13
    s_mov_b32 s{S_IT}, 0
    s_mov_b32 s{S_W1+2}, 819200
    s_mov_b32 s{S_W1+3}, 0x20000
    s_mov_b32 s{S_OUT+2}, 32768
    s_mov_b32 s{S_OUT+3}, 0x20000
    s_mov_b32 s{S_OFF}, s{S_BASE}
    s_add_u32 s{S_OFF+1}, s{S_BASE}, 8192
    s_add_u32 s{S_OFF+2}, s{S_BASE}, 16384
    s_add_u32 s{S_OFF+3}, s{S_BASE}, 24576
    v_mul_u32_u24 v5, 400, v{V_J}
    ''')
    for d in (1, 2, 3):
        a(f'''
        s_xor_b32 s{S_T}, s{S_W}, {d}
        s_mul_i32 s{S_T2}, s{S_T}, 3072
        s_add_u32 s{S_T2}, s{S_T2}, {RED + (d-1)*1024}
        v_add_u32 v{V_RW+d-1}, s{S_T2}, v{V_L16}
        s_mul_i32 s{S_T2}, s{S_T}, 6400
        s_add_u32 s{S_T2}, s{S_T2}, {IDXL}
        v_add_u32 v{IB+d}, s{S_T2}, v5
        v_add_u32 v{V_RW2+d-1}, 49152, v{V_RW+d-1}
        ''')
    a(f'''
    s_mul_i32 s{S_T}, s{S_W}, 3072
    s_add_u32 s{S_T}, s{S_T}, {RED}
    v_add_u32 v{V_RR}, s{S_T}, v{V_L16}
    v_add_u32 v{V_RR2}, 49152, v{V_RR}
    s_mul_i32 s{S_T2}, s{S_W}, 6400
    s_add_u32 s{S_T2}, s{S_T2}, {IDXL}
    v_add_u32 v{IB}, s{S_T2}, v5
    v_lshlrev_b32 v{V_SM}, 6, v{V_G}
    v_add_u32 v{V_SM}, s{S_SMB}, v{V_SM}
    v_mul_u32_u24 v{V_XA}, 26, v{V_J}
    v_and_b32 v{V_XS}, 2, v{V_XA}
    v_and_b32 v{V_XA}, 0xfffc, v{V_XA}
    v_add_u32 v{V_XA}, s{S_SMB}, v{V_XA}
    v_add_u32 v{V_XA}, 1024, v{V_XA}
    v_lshlrev_b32 v{V_OA}, 1, v{V_J}
    s_lshr_b32 s{S_IDXO}, s{S_BASE}, 11
    s_lshl_b32 s{S_T}, s{S_W}, 2
    s_add_u32 s{S_T}, s{S_T}, 384
    ''')
    for m in range(4):
        a(f'v_add_u32 v{GA+m}, s{S_IDXO}, v{IB+m}')
        a(f'v_add_u32 v{V_T0+4+m}, s{S_T}, v{IB+m}')
    F1 = [f'v_accvgpr_write_b32 a{i}, 0' for i in range(96)]
    drain(F1, 8)
    a(f'''
    s_mov_b32 s{S_G}, s{S_G0}
    s_add_u32 s{S_T}, s{S_TO}, s{S_G}
    s_mov_b32 s{S_IO}, 0
    s_mov_b32 exec_hi, 0
    s_waitcnt lgkmcnt(0)
    s_mov_b32 s{S_B1}, s16
    s_mov_b32 s{S_B1+1}, s17
    ''')
    stamp(a)
    a(f'''
    buffer_load_dwordx4 v{V_L16}, {rng("s",S_B1,4)}, 0 offen lds
    s_add_u32 m0, s{S_SMB}, 512
    s_mov_b32 s{S_W2}, s18
    s_mov_b32 s{S_W2+1}, s19
    buffer_load_dwordx4 v{V_L16}, {rng("s",S_W2,4)}, 0 offen lds
    s_add_u32 m0, s{S_SMB}, 1024
    s_add_u32 s{S_XW}, s8, s{S_XO}
    s_addc_u32 s{S_XW+1}, s9, 0
    buffer_load_dwordx4 v{V_L16}, {rng("s",S_XW,4)}, 0 offen lds
    s_mov_b32 exec_hi, -1
    s_mov_b32 s{S_TAB}, s6
    s_mov_b32 s{S_TAB+1}, s7
    s_cmp_eq_u32 s{S_W}, 3
    s_cbranch_scc1 L_idxwave
    ''')
    LATE = lines(f'''
    s_mov_b32 s{S_W1}, s14
    s_mov_b32 s{S_W1+1}, s15
    s_mov_b32 s{S_OUT}, s22
    s_mov_b32 s{S_OUT+1}, s23
    s_load_dwordx8 s[{S_WW}:{S_WW+7}], s[10:11], 0
    s_load_dword s{S_BW}, s[12:13], 0
    s_load_dword s{S_B2}, s[20:21], 0
    ''')
    WLall = [w1_load(i // 8, i % 8, S_OFF + i // 8) for i in range(26 - LD)]
    XR = IDX
    F2a = [f'ds_read_b128 {rng("v",POOL+4*e,4)}, v{V_SM} offset:{16*e}' for e in range(4)]
    F2a += [f'ds_read_b128 {rng("v",W2R+4*e,4)}, v{V_SM} offset:{512+16*e}' for e in range(4)]
    F2a += [f'ds_read2_b32 {rng("v",XR+2*e,2)}, v{V_XA} offset0:{2*e} offset1:{1+2*e}' for e in range(4)]
    F2b = []
    for c in range(8):
        for rg in range(4):
            src = POOL + 4 * rg + (c >> 1)
            if c & 1: F2b.append(f'v_and_b32 v{OWN+4*c+rg}, 0xffff0000, v{src}')
            else: F2b.append(f'v_lshlrev_b32 v{OWN+4*c+rg}, 16, v{src}')
    F2b.append(f's_and_b32 s{S_WW+6}, s{S_WW+6}, 0xffff')
    F2b += [f'v_alignbyte_b32 v{XR+e}, v{XR+e+1}, v{XR+e}, v{V_XS}' for e in range(7)]
    F2b += [f'v_dot2_f32_bf16 v{V_WIDE}, v{XR+e}, s{S_WW+e}, ' + ('0' if e == 0 else f'v{V_WIDE}') for e in range(7)]
    F2b += lines(f'''
    s_lshl_b32 s{S_BW}, s{S_BW}, 16
    s_lshl_b32 s{S_B2}, s{S_B2}, 16
    s_nop 1
    v_cvt_pk_bf16_f32 v{V_WIDE}, 0, v{V_WIDE}
    v_add_f32 v{V_WIDE}, s{S_BW}, v{V_WIDE}
    v_cvt_pk_bf16_f32 v{V_WIDE}, 0, v{V_WIDE}
    ''')
    def adv():
        a(f'''
        s_add_u32 s{S_G}, s{S_G}, 3072
        s_cmp_eq_u32 s{S_G}, {7*3072}
        s_cselect_b32 s{S_G}, 0, s{S_G}
        s_add_u32 s{S_T}, s{S_TO}, s{S_G}
        ''')
    f1 = LATE + F1
    for k in range(21):
        a(f'buffer_load_dwordx4 {rng("a",TST+4*k,4)}, v{V_L16}, {rng("s",S_TAB,4)}, s{S_T} offen offset:{1024*(k%3)}')
        if k % 3 == 2 and k < 20: adv()
        else: drain(f1, 7)
    drain(f1, 1000)
    stamp(a)
    WL = list(WLall); f2a = list(F2a); f2b = list(F2b)
    a(f'''
    s_add_u32 s{S_T}, s{S_TO}, s{S_G0}
    s_mov_b32 s{S_G}, s{S_G0}
    s_lshr_b32 s{S_T}, s{S_T}, 2
    v_add_u32 v{V_TW4}, s{S_T}, v{V_TWR}
    ''')
    nw = 0
    for k in range(21):
        a(f's_waitcnt vmcnt({20 - k + nw})')
        a(f'ds_write_b128 v{V_TW4 + (k//3)%2}, {rng("a",TST+4*k,4)} offset:{256*(k%3)}')
        if nw < 17:
            a(WL.pop(0)); nw += 1
        if k % 3 == 0 and k < 18:
            adv()
            a(f'''
            s_lshr_b32 s{S_T}, s{S_T}, 2
            v_add_u32 v{V_TW4 + (k//3+1)%2}, s{S_T}, v{V_TWR}
            ''')
        elif k in (1, 2): drain(f2a, 6)
        else:
            if k == 4: a('s_waitcnt lgkmcnt(0)')
            drain(f2b, 7)
    drain(f2b, 1000)
    a(f'''
    s_waitcnt lgkmcnt(0)
    s_branch L_join
    L_idxwave:
    s_mov_b32 m0, {IDXL}
    s_add_u32 s{S_IDX}, s4, s{S_T3}
    s_addc_u32 s{S_IDX+1}, s5, 0
    ''')
    f1 = LATE + F1
    ix = f'v{V_L16}, {rng("s",S_IDX,4)}, s{S_IO} offen'
    for k in range(25):
        a(f'buffer_load_dwordx4 {ix} offset:{1024*(k%4)} lds')
        if k % 4 == 3:
            a(f'''
            s_add_u32 s{S_IO}, s{S_IO}, 4096
            s_add_u32 m0, s{S_IO}, {IDXL}
            ''')
        drain(f1, 4)
    drain(f1, 1000)
    if DEBUG: NSTAMP[0] -= 1
    stamp(a)
    WL = list(WLall); f2a = list(F2a); f2b = list(F2b)
    a('s_waitcnt vmcnt(25)')
    drain(f2a, 100)
    drain(WL, 3)
    a('s_waitcnt lgkmcnt(0)')
    for k in range(14):
        drain(WL, 1); drain(f2b, 4)
    drain(f2b, 1000)
    a('''
    s_waitcnt vmcnt(17)
    L_join:
    ''')
    stamp(a)
    a('s_barrier')
    stamp(a)
    for m in (1, 2, 3, 0):
        a(f'ds_read_b128 {rng("v",IDX+4*m,4)}, v{GA+m}')
    for m in range(4):
        a(f'ds_read_b32 v{V_T0+m}, v{V_T0+4+m}')
    drain(WL, 1)
    for m in range(4):
        a(f'v_mov_b32 v{V_T0+4+m}, v{GA+m}')
    for m in (1, 2, 3, 0):
        a('s_waitcnt lgkmcnt(7)')
        for l in gather(0, 0, m): a(l)
    a('s_waitcnt vmcnt(10)')
    pm = perms(0, 0) + perms(0, 1)
    for i in range(4):
        drain(WL, 1); a(pm[2*i]); a(pm[2*i+1])
    a('s_waitcnt lgkmcnt(4)')
    for m in range(4):
        a(f'ds_write_b32 v{V_T0+4+m}, v{V_T0+m}')
    drain(WL, 1000)
    a('s_waitcnt lgkmcnt(4)')
    stamp(a)
    a('L_loop:')
    loop_start = len(a.lines)
    for j in range(4):
        for c in range(8):
            pm = perms(j, c + 2) if c < 6 else perms((j + 1) % 4, c - 6)
            q = (8 * j + c - 6 - LD) % 32
            ld = w1_load(q // 8, q % 8, S_OFF + q // 8)
            gaps = [[pm[0]], [ld, pm[1]], [pm[2]], [pm[3]]]
            if c == 6: gaps[0] = [f's_waitcnt vmcnt({16-LD})', pm[0]]
            if c == 7: gaps[3].append('s_waitcnt lgkmcnt(0)')
            if c < 4:
                g = gather((j + 1) % 4, (j + 1) % 2, (c + 1) % 4)
                gaps[0].append(g[0]); gaps[2].insert(0, g[1])
            if j == 2 and c >= 4:
                m = c - 4
                if c != 6: gaps[0].append(f'v_add_u32 v{GA+m}, s{S_IDXO}, v{IB+m}')
                if c == 5: gaps[3].append(f'v_add_u32 v{GA+2}, s{S_IDXO}, v{IB+2}')
                gaps[2].insert(0, f'ds_read_b128 {rng("v",IDX+4*m,4)}, v{GA+m}')
            if j == 0 and c == 3:
                gaps[3].append(f's_add_u32 s{S_BASE}, s{S_BASE}, 0x20000')
            if j == 0 and c == 4:
                gaps[0].append(f's_sub_u32 s{S_T}, s{S_BASE}, 0xc0000')
                gaps[2].append(f's_cmp_ge_u32 s{S_BASE}, 0xc0000')
                gaps[3].append(f's_cselect_b32 s{S_BASE}, s{S_T}, s{S_BASE}')
            if j == 0 and c == 5:
                gaps[0].append(f's_cmp_eq_u32 s{S_IT}, 5')
                gaps[2].append(f's_cselect_b32 s{S_OFF}, s{S_EXTRA}, s{S_BASE}')
                gaps[3].append(f's_cselect_b32 s{S_T}, 0x7ff00000, s{S_BASE}')
            if j == 0 and c == 6:
                gaps[2].append(f's_add_u32 s{S_OFF+1}, s{S_T}, 8192')
                gaps[3].append(f's_add_u32 s{S_OFF+2}, s{S_T}, 16384')
            if j == 0 and c == 7:
                gaps[2].append(f's_lshr_b32 s{S_IDXO}, s{S_BASE}, 11')
            if j == 1 and c == 4:
                gaps[0].append(f's_add_u32 s{S_IT}, s{S_IT}, 1')
            if j == 1 and c == 5:
                gaps[0].append(f's_add_u32 s{S_OFF+3}, s{S_T}, 24576')
            if j == 3 and c == 7:
                gaps[0].append(f's_cmp_lt_u32 s{S_IT}, 6')
                gaps[2].append(gaps[3].pop(0))
            slot(a, mfmas(c, j % 2), gaps)
    a('s_cbranch_scc1 L_loop')
    loop_end = len(a.lines)
    stamp(a)
    assert 2 <= LD <= 6
    def W(c):
        out = []
        for m in (1, 2, 3):
            k, b = accreg(m, c)
            base = (V_RW if c < 4 else V_RW2) + m - 1
            out.append(f'ds_write_b128 v{base}, {rng(k,b,4)} offset:{(c&3)*12288}')
        return out
    RB = [RAW + 96, RAW, RAW + 96, RAW]
    def R(e):
        out = []
        for d in range(3):
            for i, c in enumerate((2 * e, 2 * e + 1)):
                base = V_RR if c < 4 else V_RR2
                out.append(f'ds_read_b128 {rng("v",RB[e]+8*d+4*i,4)}, v{base} offset:{(c&3)*12288+d*1024}')
        return out
    HP = IDX
    def P(e):
        out = []
        for d in range(3):
            for r in range(0, 8, 2):
                out.append(f'v_pk_add_f32 {rng("v",OWN+8*e+r,2)}, {rng("v",OWN+8*e+r,2)}, {rng("v",RB[e]+8*d+r,2)}')
        for rg in range(4):
            out.append(f'v_cvt_pk_bf16_f32 v{HP+4*rg+e}, v{OWN+8*e+rg}, v{OWN+8*e+4+rg}')
        for rg in range(4):
            out.append(f'v_pk_max_i16 v{HP+4*rg+e}, v{HP+4*rg+e}, 0')
        for rg in range(4):
            out.append(f'v_dot2_f32_bf16 v{V_T0+rg}, v{HP+4*rg+e}, v{W2R+4*rg+e}, ' + ('0' if e == 0 else f'v{V_T0+rg}'))
        return out
    P0 = P(0)
    for c in range(8):
        pm = perms(0, c + 2) if c < 6 else [None] * 4
        gaps = [[p] if p else [] for p in pm]
        if c >= 1:
            w = W(c - 1)
            for k in range(3): gaps[k + 1].insert(0, w[k])
        if c == 4:
            gaps[3] += ['s_waitcnt lgkmcnt(6)', 's_barrier'] + R(0)
        if c == 6:
            gaps[3] += ['s_waitcnt lgkmcnt(12)', 's_barrier'] + R(1) + ['s_waitcnt lgkmcnt(12)']
        if c == 7:
            for k in range(4):
                gaps[k] += P0[6 * k:6 * k + 6]
        slot(a, mfmas(c, 0), gaps)
    for l in W(7): a(l)
    a('s_waitcnt lgkmcnt(12)\ns_barrier')
    for l in R(2): a(l)
    a('s_waitcnt lgkmcnt(12)')
    for l in P(1): a(l)
    a('s_waitcnt lgkmcnt(6)\ns_barrier')
    for l in R(3): a(l)
    a('s_waitcnt lgkmcnt(6)')
    for l in P(2): a(l)
    p3 = P(3)
    for d in range(3):
        a(f's_waitcnt lgkmcnt({4-2*d})')
        for l in p3[4 * d:4 * d + 4]: a(l)
    for l in p3[12:]: a(l)
    stamp(a)
    a(f'''
    s_nop 2
    v_add_f32 v{V_T0}, v{V_T0}, v{V_T0+1}
    v_add_f32 v{V_T0+2}, v{V_T0+2}, v{V_T0+3}
    v_add_f32 v{V_T0}, v{V_T0}, v{V_T0+2}
    v_mov_b32 v{V_T0+1}, v{V_T0}
    s_nop 1
    v_permlane32_swap_b32 v{V_T0}, v{V_T0+1}
    v_add_f32 v{V_T0}, v{V_T0}, v{V_T0+1}
    v_mov_b32 v{V_T0+1}, v{V_T0}
    s_nop 1
    v_permlane16_swap_b32 v{V_T0}, v{V_T0+1}
    v_add_f32 v{V_T0}, v{V_T0}, v{V_T0+1}
    v_cvt_pk_bf16_f32 v{V_T0}, 0, v{V_T0}
    v_add_f32 v{V_T0}, s{S_B2}, v{V_T0}
    v_cvt_pk_bf16_f32 v{V_T0}, 0, v{V_T0}
    v_add_f32 v{V_T0}, v{V_WIDE}, v{V_T0}
    v_cvt_pk_bf16_f32 v{V_T0}, 0, v{V_T0}
    v_mul_f32 v{V_T0}, 0xbfb8aa3b, v{V_T0}
    v_exp_f32 v{V_T0}, v{V_T0}
    s_mov_b32 exec_lo, 0xffff
    v_add_f32 v{V_T0}, 1.0, v{V_T0}
    v_rcp_f32 v{V_T0}, v{V_T0}
    s_mov_b32 exec_hi, 0
    v_cvt_pk_bf16_f32 v{V_T0}, v{V_T0}, v{V_T0}
    buffer_store_short v{V_T0}, v{V_OA}, {rng("s",S_OUT,4)}, s{S_OO} offen
    ''')
    if DEBUG:
        a('s_mov_b64 exec, -1')
        stamp(a)
        n = NSTAMP[0]
        a(f'''
        s_mov_b32 s{S_OUT}, s98
        s_mov_b32 s{S_OUT+1}, s99
        s_mov_b32 s{S_OUT+2}, 0x1000000
        s_lshl_b32 s{S_T}, s2, 2
        s_add_u32 s{S_T}, s{S_T}, s{S_W}
        s_mul_i32 s{S_T}, s{S_T}, {16*n}
        v_lshlrev_b32 v{V_T0+1}, 2, v0
        s_mov_b32 exec_lo, {hex(((1<<(4*n))-1)&0xffffffff)}
        s_mov_b32 exec_hi, {hex(((1<<(4*n))-1)>>32)}
        buffer_store_dword v19, v{V_T0+1}, {rng("s",S_OUT,4)}, s{S_T} offen
        ''')
    a('''
    L_end:
    s_endpgm
    ''')
    L = a.lines
    errs = hazard.check(L, 'linear')
    errs += hazard.check(L[loop_start:loop_end] + L[loop_start:loop_end], 'backedge')
    return L, errs

HEADER = open('cdna_kernels/' + NAME + '.s.ref').read().split('; Override launch')[0]

def main():
    global DEBUG, LD
    for arg in list(sys.argv):
        if arg == '--debug': DEBUG = 1; sys.argv.remove(arg)
        if arg.startswith('--ld='): LD = int(arg[5:]); sys.argv.remove(arg)
        if arg.startswith('--skip='): SKIP.update(arg[7:].split(',')); sys.argv.remove(arg)
    L, errs = build()
    for e in errs: print(e, file=sys.stderr)
    out = HEADER
    out += f'; @launch grid=(256,1,1) block=(256,1,1) lds={LDS_BYTES}\n'
    out += f'''.amdgcn_target "amdgcn-amd-amdhsa--gfx950"
.text
.globl {NAME}_kernel
.p2align 8
.type {NAME}_kernel,@function
{NAME}_kernel:
'''
    out += '\n'.join(L) + '\n'
    out += f'''.section .rodata,"a"
.p2align 6
.amdhsa_kernel {NAME}_kernel
  .amdhsa_next_free_vgpr 512
  .amdhsa_next_free_sgpr 102
  .amdhsa_accum_offset 256
  .amdhsa_group_segment_fixed_size 0
  .amdhsa_kernarg_size 96
  .amdhsa_user_sgpr_count 2
  .amdhsa_user_sgpr_kernarg_segment_ptr 1
  .amdhsa_system_sgpr_workgroup_id_x 1
.end_amdhsa_kernel
'''
    path = sys.argv[1] if len(sys.argv) > 1 else 'cdna_kernels/' + NAME + '.s'
    open(path, 'w').write(out)
    print('wrote', path, len(L), 'lines;', len(errs), 'hazards', 'stamps', NSTAMP[0])

if __name__ == '__main__':
    main()
```

```python
import sys
import hazard

NAME = 'standalone__deep_cross_wide_deep__recsys'

PL = 16416
RED = 3 * PL + 16000
IDXL = RED + 49152
SM = IDXL + 25600
LDS_BYTES = RED + 98304

RAW = 128; POOL = 112; OWN = 80; IDX = 64; W2R = 48; GA = 44; IB = 40
V_W1OFF = 1; V_GCONST = 2; V_XA = 3; V_XS = 4; V_L16 = 7; V_G = 9; V_TWR = 10; V_J = 11; V_WIDE = 12
V_RW = 13
V_RR = 16; V_SM = 17; V_OA = 18
V_T0 = 20
V_TW4 = 28
V_RW2 = 30
V_RR2 = 33
EBUF = 96; TST = 128
S_W1 = 24; S_IDX = 28; S_TAB = 32; S_XW = 36; S_B1 = 40; S_W2 = 44; S_OUT = 48
S_W = 52; S_SELL = 53; S_SELH = 54; S_IT = 55; S_BASE = 56; S_OFF = 57
S_EXTRA = 61; S_OO = 62; S_T = 63; S_WW = 64
S_BW = 72; S_B2 = 73; S_T2 = 74; S_T3 = 75; S_IDXO = 78
S_XO = 80; S_SMB = 81; S_IO = 82; S_TO = 83; S_G0 = 84; S_G = 85

LD = 4
DEBUG = 0
NSTAMP = [0]
SKIP = set()

def rng(kind, base, n): return f'{kind}[{base}:{base + n - 1}]'
def lines(t): return [l.strip() for l in t.strip('\n').split('\n') if l.strip()]

class Asm:
    def __init__(self): self.lines = []
    def __call__(self, s):
        for l in lines(s):
            self.lines.append(l if l.endswith(':') else '    ' + l)

def accreg(m, c):
    if m == 0: return ('v', OWN + 4 * c)
    return ('a', (m - 1) * 32 + 4 * c)
def raw(j, r, p): return RAW + 32 * j + 4 * r + p
def perms(j, c):
    pb = POOL + 4 * (c % 4)
    sel = S_SELH if c & 1 else S_SELL
    return [f'v_perm_b32 v{pb+t}, v{raw(j,2*t+1,c>>1)}, v{raw(j,2*t,c>>1)}, s{sel}' for t in range(4)]
def mfmas(c, eb):
    pb = POOL + 4 * (c % 4)
    out = []
    for m in (1, 2, 3, 0):
        k, b = accreg(m, c)
        e = EBUF + 16 * eb + 4 * m
        out.append(f'v_mfma_f32_16x16x32_bf16 {rng(k,b,4)}, {rng("v",pb,4)}, {rng("a",e,4)}, {rng(k,b,4)}')
    return out
def w1_load(j, r, soff):
    return f'buffer_load_dwordx4 {rng("v",raw(j,r,0),4)}, v{V_W1OFF}, {rng("s",S_W1,4)}, s{soff} offen offset:{256*r}'
def gather(jf, eb, m):
    e = EBUF + 16 * eb + 4 * m
    return [f'v_lshl_add_u32 v{GA+m}, v{IDX+4*m+jf}, 4, v{V_GCONST}', f'ds_read_b128 {rng("a",e,4)}, v{GA+m}']
def skipped(t):
    if 'perm' in SKIP and t.startswith('v_perm_b32'): return True
    if 'load' in SKIP and (t.startswith('buffer_load') or 'vmcnt' in t): return True
    if 'gather' in SKIP and t.startswith('ds_read_b128 a'): return True
    if 'mfma' in SKIP and t.startswith('v_mfma'): return True
    return False
def slot(a0, mf, gaps):
    def a(t):
        if not skipped(t): a0(t)
    for k in range(len(mf)):
        a(mf[k])
        for t in gaps[k]: a(t)
def stamp(a):
    if not DEBUG: return
    k = NSTAMP[0]; NSTAMP[0] += 1
    a(f'''
    s_memrealtime s[94:95]
    s_memtime s[96:97]
    s_waitcnt lgkmcnt(0)
    v_writelane_b32 v19, s94, {4*k}
    v_writelane_b32 v19, s95, {4*k+1}
    v_writelane_b32 v19, s96, {4*k+2}
    v_writelane_b32 v19, s97, {4*k+3}
    ''')

def build():
    a = Asm()
    def drain(lst, n):
        for _ in range(min(n, len(lst))): a(lst.pop(0))
    a('''
    s_cmp_ge_u32 s2, 256
    s_cbranch_scc1 L_end
    ''')
    stamp(a)
    if DEBUG: a('s_load_dwordx2 s[98:99], s[0:1], 88')
    a(f'''
    s_load_dwordx16 s[4:19], s[0:1], 0
    s_load_dwordx4 s[20:23], s[0:1], 64
    v_lshrrev_b32 v1, 6, v0
    v_and_b32 v0, 63, v0
    v_readfirstlane_b32 s{S_W}, v1
    v_lshlrev_b32 v{V_L16}, 4, v0
    s_mov_b32 s{S_IDX+2}, 25600
    s_mov_b32 s{S_IDX+3}, 0x20000
    s_mov_b32 s{S_TAB+2}, 64000
    s_mov_b32 s{S_TAB+3}, 0x20000
    s_mov_b32 s{S_XW+2}, 416
    s_mov_b32 s{S_XW+3}, 0x20000
    s_mov_b32 s{S_B1+2}, 256
    s_mov_b32 s{S_B1+3}, 0x20000
    s_mov_b32 s{S_W2+2}, 256
    s_mov_b32 s{S_W2+3}, 0x20000
    s_lshl_b32 s{S_T2}, s2, 2
    s_add_u32 s{S_T2}, s{S_T2}, s{S_W}
    s_mul_i32 s{S_XO}, s{S_T2}, 416
    s_lshl_b32 s{S_OO}, s{S_T2}, 5
    s_mul_i32 s{S_T3}, s2, 25600
    s_lshl_b32 s{S_SMB}, s{S_W}, 11
    s_add_u32 s{S_SMB}, s{S_SMB}, {SM}
    s_mov_b32 m0, s{S_SMB}
    v_and_b32 v{V_J}, 15, v0
    v_lshrrev_b32 v{V_G}, 4, v0
    v_lshlrev_b32 v1, 4, v{V_J}
    v_lshl_add_u32 v{V_W1OFF}, v{V_G}, 11, v1
    v_mul_u32_u24 v{V_GCONST}, {PL}, v{V_G}
    v_and_b32 v10, 3, v0
    v_mul_u32_u24 v10, {PL}, v10
    v_lshrrev_b32 v8, 2, v0
    v_lshl_add_u32 v{V_TWR}, v8, 4, v10
    s_mov_b32 s{S_SELL}, 0x05040100
    s_mov_b32 s{S_SELH}, 0x07060302
    s_lshr_b32 s{S_T}, s2, 3
    s_and_b32 s{S_G0}, s{S_T}, 3
    s_mul_i32 s{S_G0}, s{S_G0}, {2*3072}
    s_mul_i32 s{S_TO}, s{S_W}, {21*1024}
    s_mul_i32 s{S_T2}, s{S_T}, 43
    s_lshr_b32 s{S_T2}, s{S_T2}, 8
    s_mul_i32 s{S_T2}, s{S_T2}, 6
    s_sub_u32 s{S_T}, s{S_T}, s{S_T2}
    s_lshl_b32 s{S_T}, s{S_T}, 17
    s_lshl_b32 s{S_T2}, s{S_W}, 15
    s_add_u32 s{S_BASE}, s{S_T}, s{S_T2}
    s_add_u32 s{S_EXTRA}, s{S_W}, 96
    s_lshl_b32 s{S_EXTRA}, s{S_EXTRA}, 13
    s_mov_b32 s{S_IT}, 0
    s_mov_b32 s{S_W1+2}, 819200
    s_mov_b32 s{S_W1+3}, 0x20000
    s_mov_b32 s{S_OUT+2}, 32768
    s_mov_b32 s{S_OUT+3}, 0x20000
    s_mov_b32 s{S_OFF}, s{S_BASE}
    s_add_u32 s{S_OFF+1}, s{S_BASE}, 8192
    s_add_u32 s{S_OFF+2}, s{S_BASE}, 16384
    s_add_u32 s{S_OFF+3}, s{S_BASE}, 24576
    v_mul_u32_u24 v5, 400, v{V_J}
    ''')
    for d in (1, 2, 3):
        a(f'''
        s_xor_b32 s{S_T}, s{S_W}, {d}
        s_mul_i32 s{S_T2}, s{S_T}, 3072
        s_add_u32 s{S_T2}, s{S_T2}, {RED + (d-1)*1024}
        v_add_u32 v{V_RW+d-1}, s{S_T2}, v{V_L16}
        s_mul_i32 s{S_T2}, s{S_T}, 6400
        s_add_u32 s{S_T2}, s{S_T2}, {IDXL}
        v_add_u32 v{IB+d}, s{S_T2}, v5
        v_add_u32 v{V_RW2+d-1}, 49152, v{V_RW+d-1}
        ''')
    a(f'''
    s_mul_i32 s{S_T}, s{S_W}, 3072
    s_add_u32 s{S_T}, s{S_T}, {RED}
    v_add_u32 v{V_RR}, s{S_T}, v{V_L16}
    v_add_u32 v{V_RR2}, 49152, v{V_RR}
    s_mul_i32 s{S_T2}, s{S_W}, 6400
    s_add_u32 s{S_T2}, s{S_T2}, {IDXL}
    v_add_u32 v{IB}, s{S_T2}, v5
    v_lshlrev_b32 v{V_SM}, 6, v{V_G}
    v_add_u32 v{V_SM}, s{S_SMB}, v{V_SM}
    v_mul_u32_u24 v{V_XA}, 26, v{V_J}
    v_and_b32 v{V_XS}, 2, v{V_XA}
    v_and_b32 v{V_XA}, 0xfffc, v{V_XA}
    v_add_u32 v{V_XA}, s{S_SMB}, v{V_XA}
    v_add_u32 v{V_XA}, 1024, v{V_XA}
    v_lshlrev_b32 v{V_OA}, 1, v{V_J}
    s_lshr_b32 s{S_IDXO}, s{S_BASE}, 11
    s_lshl_b32 s{S_T}, s{S_W}, 2
    s_add_u32 s{S_T}, s{S_T}, 384
    ''')
    for m in range(4):
        a(f'v_add_u32 v{GA+m}, s{S_IDXO}, v{IB+m}')
        a(f'v_add_u32 v{V_T0+4+m}, s{S_T}, v{IB+m}')
    F1 = [f'v_accvgpr_write_b32 a{i}, 0' for i in range(96)]
    drain(F1, 8)
    a(f'''
    s_mov_b32 s{S_G}, s{S_G0}
    s_add_u32 s{S_T}, s{S_TO}, s{S_G}
    s_mov_b32 s{S_IO}, 0
    s_mov_b32 exec_hi, 0
    s_waitcnt lgkmcnt(0)
    s_mov_b32 s{S_B1}, s16
    s_mov_b32 s{S_B1+1}, s17
    ''')
    stamp(a)
    a(f'''
    buffer_load_dwordx4 v{V_L16}, {rng("s",S_B1,4)}, 0 offen lds
    s_add_u32 m0, s{S_SMB}, 512
    s_mov_b32 s{S_W2}, s18
    s_mov_b32 s{S_W2+1}, s19
    buffer_load_dwordx4 v{V_L16}, {rng("s",S_W2,4)}, 0 offen lds
    s_add_u32 m0, s{S_SMB}, 1024
    s_add_u32 s{S_XW}, s8, s{S_XO}
    s_addc_u32 s{S_XW+1}, s9, 0
    buffer_load_dwordx4 v{V_L16}, {rng("s",S_XW,4)}, 0 offen lds
    s_mov_b32 exec_hi, -1
    s_mov_b32 s{S_TAB}, s6
    s_mov_b32 s{S_TAB+1}, s7
    s_cmp_eq_u32 s{S_W}, 3
    s_cbranch_scc1 L_idxwave
    ''')
    LATE = lines(f'''
    s_mov_b32 s{S_W1}, s14
    s_mov_b32 s{S_W1+1}, s15
    s_mov_b32 s{S_OUT}, s22
    s_mov_b32 s{S_OUT+1}, s23
    s_load_dwordx8 s[{S_WW}:{S_WW+7}], s[10:11], 0
    s_load_dword s{S_BW}, s[12:13], 0
    s_load_dword s{S_B2}, s[20:21], 0
    ''')
    WLall = [w1_load(i // 8, i % 8, S_OFF + i // 8) for i in range(26 - LD)]
    XR = IDX
    F2a = [f'ds_read_b128 {rng("v",POOL+4*e,4)}, v{V_SM} offset:{16*e}' for e in range(4)]
    F2a += [f'ds_read_b128 {rng("v",W2R+4*e,4)}, v{V_SM} offset:{512+16*e}' for e in range(4)]
    F2a += [f'ds_read2_b32 {rng("v",XR+2*e,2)}, v{V_XA} offset0:{2*e} offset1:{1+2*e}' for e in range(4)]
    F2b = []
    for c in range(8):
        for rg in range(4):
            src = POOL + 4 * rg + (c >> 1)
            if c & 1: F2b.append(f'v_and_b32 v{OWN+4*c+rg}, 0xffff0000, v{src}')
            else: F2b.append(f'v_lshlrev_b32 v{OWN+4*c+rg}, 16, v{src}')
    F2b.append(f's_and_b32 s{S_WW+6}, s{S_WW+6}, 0xffff')
    F2b += [f'v_alignbyte_b32 v{XR+e}, v{XR+e+1}, v{XR+e}, v{V_XS}' for e in range(7)]
    F2b += [f'v_dot2_f32_bf16 v{V_WIDE}, v{XR+e}, s{S_WW+e}, ' + ('0' if e == 0 else f'v{V_WIDE}') for e in range(7)]
    F2b += lines(f'''
    s_lshl_b32 s{S_BW}, s{S_BW}, 16
    s_lshl_b32 s{S_B2}, s{S_B2}, 16
    s_nop 1
    v_cvt_pk_bf16_f32 v{V_WIDE}, 0, v{V_WIDE}
    v_add_f32 v{V_WIDE}, s{S_BW}, v{V_WIDE}
    v_cvt_pk_bf16_f32 v{V_WIDE}, 0, v{V_WIDE}
    ''')
    def adv():
        a(f'''
        s_add_u32 s{S_G}, s{S_G}, 3072
        s_cmp_eq_u32 s{S_G}, {7*3072}
        s_cselect_b32 s{S_G}, 0, s{S_G}
        s_add_u32 s{S_T}, s{S_TO}, s{S_G}
        ''')
    f1 = LATE + F1
    for k in range(21):
        a(f'buffer_load_dwordx4 {rng("a",TST+4*k,4)}, v{V_L16}, {rng("s",S_TAB,4)}, s{S_T} offen offset:{1024*(k%3)}')
        if k % 3 == 2 and k < 20: adv()
        else: drain(f1, 7)
    drain(f1, 1000)
    stamp(a)
    WL = list(WLall); f2a = list(F2a); f2b = list(F2b)
    a(f'''
    s_add_u32 s{S_T}, s{S_TO}, s{S_G0}
    s_mov_b32 s{S_G}, s{S_G0}
    s_lshr_b32 s{S_T}, s{S_T}, 2
    v_add_u32 v{V_TW4}, s{S_T}, v{V_TWR}
    ''')
    nw = 0
    for k in range(21):
        a(f's_waitcnt vmcnt({20 - k + nw})')
        a(f'ds_write_b128 v{V_TW4 + (k//3)%2}, {rng("a",TST+4*k,4)} offset:{256*(k%3)}')
        if nw < 17:
            a(WL.pop(0)); nw += 1
        if k % 3 == 0 and k < 18:
            adv()
            a(f'''
            s_lshr_b32 s{S_T}, s{S_T}, 2
            v_add_u32 v{V_TW4 + (k//3+1)%2}, s{S_T}, v{V_TWR}
            ''')
        elif k in (1, 2): drain(f2a, 6)
        else:
            if k == 4: a('s_waitcnt lgkmcnt(0)')
            drain(f2b, 7)
    drain(f2b, 1000)
    a(f'''
    s_waitcnt lgkmcnt(0)
    s_branch L_join
    L_idxwave:
    s_mov_b32 m0, {IDXL}
    s_add_u32 s{S_IDX}, s4, s{S_T3}
    s_addc_u32 s{S_IDX+1}, s5, 0
    ''')
    f1 = LATE + F1
    ix = f'v{V_L16}, {rng("s",S_IDX,4)}, s{S_IO} offen'
    for k in range(25):
        a(f'buffer_load_dwordx4 {ix} offset:{1024*(k%4)} lds')
        if k % 4 == 3:
            a(f'''
            s_add_u32 s{S_IO}, s{S_IO}, 4096
            s_add_u32 m0, s{S_IO}, {IDXL}
            ''')
        drain(f1, 4)
    drain(f1, 1000)
    if DEBUG: NSTAMP[0] -= 1
    stamp(a)
    WL = list(WLall); f2a = list(F2a); f2b = list(F2b)
    a('s_waitcnt vmcnt(25)')
    drain(f2a, 100)
    drain(WL, 3)
    a('s_waitcnt lgkmcnt(0)')
    for k in range(14):
        drain(WL, 1); drain(f2b, 4)
    drain(f2b, 1000)
    a('''
    s_waitcnt vmcnt(17)
    L_join:
    ''')
    stamp(a)
    a('s_barrier')
    stamp(a)
    for m in (1, 2, 3, 0):
        a(f'ds_read_b128 {rng("v",IDX+4*m,4)}, v{GA+m}')
    for m in range(4):
        a(f'ds_read_b32 v{V_T0+m}, v{V_T0+4+m}')
    drain(WL, 1)
    for m in range(4):
        a(f'v_mov_b32 v{V_T0+4+m}, v{GA+m}')
    for m in (1, 2, 3, 0):
        a('s_waitcnt lgkmcnt(7)')
        for l in gather(0, 0, m): a(l)
    a('s_waitcnt vmcnt(10)')
    pm = perms(0, 0) + perms(0, 1)
    for i in range(4):
        drain(WL, 1); a(pm[2*i]); a(pm[2*i+1])
    a('s_waitcnt lgkmcnt(4)')
    for m in range(4):
        a(f'ds_write_b32 v{V_T0+4+m}, v{V_T0+m}')
    drain(WL, 1000)
    a('s_waitcnt lgkmcnt(4)')
    stamp(a)
    a('L_loop:')
    loop_start = len(a.lines)
    for j in range(4):
        for c in range(8):
            pm = perms(j, c + 2) if c < 6 else perms((j + 1) % 4, c - 6)
            q = (8 * j + c - 6 - LD) % 32
            ld = w1_load(q // 8, q % 8, S_OFF + q // 8)
            gaps = [[pm[0]], [ld, pm[1]], [pm[2]], [pm[3]]]
            if c == 6: gaps[0] = [f's_waitcnt vmcnt({16-LD})', pm[0]]
            if c == 7: gaps[3].append('s_waitcnt lgkmcnt(0)')
            if c < 4:
                g = gather((j + 1) % 4, (j + 1) % 2, (c + 1) % 4)
                gaps[0].append(g[0]); gaps[2].insert(0, g[1])
            if j == 2 and c >= 4:
                m = c - 4
                if c != 6: gaps[0].append(f'v_add_u32 v{GA+m}, s{S_IDXO}, v{IB+m}')
                if c == 5: gaps[3].append(f'v_add_u32 v{GA+2}, s{S_IDXO}, v{IB+2}')
                gaps[2].insert(0, f'ds_read_b128 {rng("v",IDX+4*m,4)}, v{GA+m}')
            if j == 0 and c == 3:
                gaps[3].append(f's_add_u32 s{S_BASE}, s{S_BASE}, 0x20000')
            if j == 0 and c == 4:
                gaps[0].append(f's_sub_u32 s{S_T}, s{S_BASE}, 0xc0000')
                gaps[2].append(f's_cmp_ge_u32 s{S_BASE}, 0xc0000')
                gaps[3].append(f's_cselect_b32 s{S_BASE}, s{S_T}, s{S_BASE}')
            if j == 0 and c == 5:
                gaps[0].append(f's_cmp_eq_u32 s{S_IT}, 5')
                gaps[2].append(f's_cselect_b32 s{S_OFF}, s{S_EXTRA}, s{S_BASE}')
                gaps[3].append(f's_cselect_b32 s{S_T}, 0x7ff00000, s{S_BASE}')
            if j == 0 and c == 6:
                gaps[2].append(f's_add_u32 s{S_OFF+1}, s{S_T}, 8192')
                gaps[3].append(f's_add_u32 s{S_OFF+2}, s{S_T}, 16384')
            if j == 0 and c == 7:
                gaps[2].append(f's_lshr_b32 s{S_IDXO}, s{S_BASE}, 11')
            if j == 1 and c == 4:
                gaps[0].append(f's_add_u32 s{S_IT}, s{S_IT}, 1')
            if j == 1 and c == 5:
                gaps[0].append(f's_add_u32 s{S_OFF+3}, s{S_T}, 24576')
            if j == 3 and c == 7:
                gaps[0].append(f's_cmp_lt_u32 s{S_IT}, 6')
                gaps[2].append(gaps[3].pop(0))
            slot(a, mfmas(c, j % 2), gaps)
    a('s_cbranch_scc1 L_loop')
    loop_end = len(a.lines)
    stamp(a)
    assert 2 <= LD <= 6
    def W(c):
        out = []
        for m in (1, 2, 3):
            k, b = accreg(m, c)
            base = (V_RW if c < 4 else V_RW2) + m - 1
            out.append(f'ds_write_b128 v{base}, {rng(k,b,4)} offset:{(c&3)*12288}')
        return out
    RB = [RAW + 96, RAW, RAW + 96, RAW]
    def R(e):
        out = []
        for d in range(3):
            for i, c in enumerate((2 * e, 2 * e + 1)):
                base = V_RR if c < 4 else V_RR2
                out.append(f'ds_read_b128 {rng("v",RB[e]+8*d+4*i,4)}, v{base} offset:{(c&3)*12288+d*1024}')
        return out
    HP = IDX
    def P(e):
        out = []
        for d in range(3):
            for r in range(0, 8, 2):
                out.append(f'v_pk_add_f32 {rng("v",OWN+8*e+r,2)}, {rng("v",OWN+8*e+r,2)}, {rng("v",RB[e]+8*d+r,2)}')
        for rg in range(4):
            out.append(f'v_cvt_pk_bf16_f32 v{HP+4*rg+e}, v{OWN+8*e+rg}, v{OWN+8*e+4+rg}')
        for rg in range(4):
            out.append(f'v_pk_max_i16 v{HP+4*rg+e}, v{HP+4*rg+e}, 0')
        for rg in range(4):
            out.append(f'v_dot2_f32_bf16 v{V_T0+rg}, v{HP+4*rg+e}, v{W2R+4*rg+e}, ' + ('0' if e == 0 else f'v{V_T0+rg}'))
        return out
    P0 = P(0)
    for c in range(8):
        pm = perms(0, c + 2) if c < 6 else [None] * 4
        gaps = [[p] if p else [] for p in pm]
        if c >= 1:
            w = W(c - 1)
            for k in range(3): gaps[k + 1].insert(0, w[k])
        if c == 4:
            gaps[3] += ['s_waitcnt lgkmcnt(6)', 's_barrier'] + R(0)
        if c == 6:
            gaps[3] += ['s_waitcnt lgkmcnt(12)', 's_barrier'] + R(1) + ['s_waitcnt lgkmcnt(12)']
        if c == 7:
            for k in range(4):
                gaps[k] += P0[6 * k:6 * k + 6]
        slot(a, mfmas(c, 0), gaps)
    for l in W(7): a(l)
    a('s_waitcnt lgkmcnt(12)\ns_barrier')
    for l in R(2): a(l)
    a('s_waitcnt lgkmcnt(12)')
    for l in P(1): a(l)
    a('s_waitcnt lgkmcnt(6)\ns_barrier')
    for l in R(3): a(l)
    a('s_waitcnt lgkmcnt(6)')
    for l in P(2): a(l)
    p3 = P(3)
    for d in range(3):
        a(f's_waitcnt lgkmcnt({4-2*d})')
        for l in p3[4 * d:4 * d + 4]: a(l)
    for l in p3[12:]: a(l)
    stamp(a)
    a(f'''
    s_nop 2
    v_add_f32 v{V_T0}, v{V_T0}, v{V_T0+1}
    v_add_f32 v{V_T0+2}, v{V_T0+2}, v{V_T0+3}
    v_add_f32 v{V_T0}, v{V_T0}, v{V_T0+2}
    v_mov_b32 v{V_T0+1}, v{V_T0}
    s_nop 1
    v_permlane32_swap_b32 v{V_T0}, v{V_T0+1}
    v_add_f32 v{V_T0}, v{V_T0}, v{V_T0+1}
    v_mov_b32 v{V_T0+1}, v{V_T0}
    s_nop 1
    v_permlane16_swap_b32 v{V_T0}, v{V_T0+1}
    v_add_f32 v{V_T0}, v{V_T0}, v{V_T0+1}
    v_cvt_pk_bf16_f32 v{V_T0}, 0, v{V_T0}
    v_add_f32 v{V_T0}, s{S_B2}, v{V_T0}
    v_cvt_pk_bf16_f32 v{V_T0}, 0, v{V_T0}
    v_add_f32 v{V_T0}, v{V_WIDE}, v{V_T0}
    v_cvt_pk_bf16_f32 v{V_T0}, 0, v{V_T0}
    v_mul_f32 v{V_T0}, 0xbfb8aa3b, v{V_T0}
    v_exp_f32 v{V_T0}, v{V_T0}
    s_mov_b32 exec_lo, 0xffff
    v_add_f32 v{V_T0}, 1.0, v{V_T0}
    v_rcp_f32 v{V_T0}, v{V_T0}
    s_mov_b32 exec_hi, 0
    v_cvt_pk_bf16_f32 v{V_T0}, v{V_T0}, v{V_T0}
    buffer_store_short v{V_T0}, v{V_OA}, {rng("s",S_OUT,4)}, s{S_OO} offen
    ''')
    if DEBUG:
        a('s_mov_b64 exec, -1')
        stamp(a)
        n = NSTAMP[0]
        a(f'''
        s_mov_b32 s{S_OUT}, s98
        s_mov_b32 s{S_OUT+1}, s99
        s_mov_b32 s{S_OUT+2}, 0x1000000
        s_lshl_b32 s{S_T}, s2, 2
        s_add_u32 s{S_T}, s{S_T}, s{S_W}
        s_mul_i32 s{S_T}, s{S_T}, {16*n}
        v_lshlrev_b32 v{V_T0+1}, 2, v0
        s_mov_b32 exec_lo, {hex(((1<<(4*n))-1)&0xffffffff)}
        s_mov_b32 exec_hi, {hex(((1<<(4*n))-1)>>32)}
        buffer_store_dword v19, v{V_T0+1}, {rng("s",S_OUT,4)}, s{S_T} offen
        ''')
    a('''
    L_end:
    s_endpgm
    ''')
    L = a.lines
    errs = hazard.check(L, 'linear')
    errs += hazard.check(L[loop_start:loop_end] + L[loop_start:loop_end], 'backedge')
    return L, errs

HEADER = open('cdna_kernels/' + NAME + '.s.ref').read().split('; Override launch')[0]

DESC = """;
;  * embedding table lives in LDS as 4 planes of 16-byte chunks; B operand of each MFMA is gathered with ds_read_b128
;  * W1 rows are streamed L2 -> VGPR with buffer_load_dwordx4 and transposed into A fragments with v_perm_b32
;  * v_mfma_f32_16x16x32_bf16, fp32 accumulation; per-wave partial sums are combined through LDS in 4 stages
"""

def main():
    global DEBUG, LD
    for arg in list(sys.argv):
        if arg == '--debug': DEBUG = 1; sys.argv.remove(arg)
        if arg.startswith('--ld='): LD = int(arg[5:]); sys.argv.remove(arg)
        if arg.startswith('--skip='): SKIP.update(arg[7:].split(',')); sys.argv.remove(arg)
    L, errs = build()
    for e in errs: print(e, file=sys.stderr)
    out = HEADER
    out += f'; @launch grid=(256,1,1) block=(256,1,1) lds={LDS_BYTES}\n'
    out += DESC
    out += f'''.amdgcn_target "amdgcn-amd-amdhsa--gfx950"
.text
.globl {NAME}_kernel
.p2align 8
.type {NAME}_kernel,@function
{NAME}_kernel:
'''
    out += '\n'.join(L) + '\n'
    out += f'''.section .rodata,"a"
.p2align 6
.amdhsa_kernel {NAME}_kernel
  .amdhsa_next_free_vgpr 512
  .amdhsa_next_free_sgpr 102
  .amdhsa_accum_offset 256
  .amdhsa_group_segment_fixed_size 0
  .amdhsa_kernarg_size 96
  .amdhsa_user_sgpr_count 2
  .amdhsa_user_sgpr_kernarg_segment_ptr 1
  .amdhsa_system_sgpr_workgroup_id_x 1
.end_amdhsa_kernel
'''
    path = sys.argv[1] if len(sys.argv) > 1 else 'cdna_kernels/' + NAME + '.s'
    open(path, 'w').write(out)
    print('wrote', path, len(L), 'lines;', len(errs), 'hazards', 'stamps', NSTAMP[0])

if __name__ == '__main__':
    main()
```
